```python
import torch

def _softmax(x, axis=-1):
    return torch.softmax(x, dim=axis)
def _gelu(x):
    return torch.nn.functional.gelu(x, approximate="tanh")
def _silu(x):
    return torch.nn.functional.silu(x)
def _sigmoid(x):
    return torch.sigmoid(x)
def _layernorm(x, axis=-1, eps=1e-5):
    m = x.mean(dim=axis, keepdim=True)
    v = x.var(dim=axis, keepdim=True, unbiased=False)
    return (x - m) / torch.sqrt(v + eps)
def _scatter_add(tgt, idx, src, axis=0):
    return tgt.clone().index_add_(axis, idx, src)
def _segment_sum(src, seg, n):
    out = torch.zeros((n,) + src.shape[1:], dtype=src.dtype)
    return out.index_add_(0, seg, src)
def _pad(x, pw):
    flat = tuple(v for pair in reversed(pw) for v in pair)
    return torch.nn.functional.pad(x, flat)

kernel_name = 'recurrent_scan__ssm_conv_s5__glu_gated_geglu__prompt'

def setup_inputs():

    _w = (lambda a: (lambda t: t.to(torch.bfloat16) if t.is_floating_point() else t)(torch.as_tensor(a)))
    def _A_setup():
        B, S, D = 1, 2048, 512
        P = D
        Lambda_re = -0.5 * (lambda _x: torch.exp(torch.as_tensor(_x)))((lambda *s: torch.randn(*s, dtype=torch.bfloat16) * 0.8)(P))
        Lambda_im = (lambda *s: torch.randn(*s, dtype=torch.bfloat16) * 0.8)(P) * 1.0
        B_re = (lambda *s: torch.randn(*s, dtype=torch.bfloat16) * 1.6)(P, D) * (D ** -0.5)
        B_im = (lambda *s: torch.randn(*s, dtype=torch.bfloat16) * 0.8)(P, D) * (D ** -0.5)
        C_re = (lambda *s: torch.randn(*s, dtype=torch.bfloat16) * 1.6)(D, P) * (P ** -0.5)
        C_im = (lambda *s: torch.randn(*s, dtype=torch.bfloat16) * 1.6)(D, P) * (P ** -0.5)
        log_dt = (lambda *s: torch.randn(*s, dtype=torch.bfloat16) * 0.8)(P) * 0.3 - 2.0
        Dskip = (lambda *s: torch.randn(*s, dtype=torch.bfloat16) * 0.8)(D)
        return {
            "x": _w((lambda *s: torch.randn(*s, dtype=torch.bfloat16) * 0.05)(B, S, D)),
            "Lambda_re": _w(Lambda_re),
            "Lambda_im": _w(Lambda_im),
            "B_re": _w(B_re),
            "B_im": _w(B_im),
            "C_re": _w(C_re),
            "C_im": _w(C_im),
            "log_dt": _w(log_dt),
            "Dskip": _w(Dskip),
        }
    _A_in = _A_setup()

    def _B_setup():
        B, S, Dm, Df = 1, 2048, 512, 1376
        return {
            "x": _w((lambda *s: torch.randn(*s, dtype=torch.bfloat16) * 0.05)(B, S, Dm)),
            "w_gate": _w((lambda *s: torch.randn(*s, dtype=torch.bfloat16) * 0.2)(Dm, Df) * (Dm ** -0.5)),
            "w_up": _w((lambda *s: torch.randn(*s, dtype=torch.bfloat16) * 0.2)(Dm, Df) * (Dm ** -0.5)),
            "w_down": _w((lambda *s: torch.randn(*s, dtype=torch.bfloat16) * 0.2)(Df, Dm) * (Df ** -0.5)),
        }
    _B_in = _B_setup()

    return {
        "A_x": _A_in["x"],
        "A_Lambda_re": _A_in["Lambda_re"],
        "A_Lambda_im": _A_in["Lambda_im"],
        "A_B_re": _A_in["B_re"],
        "A_B_im": _A_in["B_im"],
        "A_C_re": _A_in["C_re"],
        "A_C_im": _A_in["C_im"],
        "A_log_dt": _A_in["log_dt"],
        "A_Dskip": _A_in["Dskip"],
        "B_x": _B_in["x"],
        "B_w_gate": _B_in["w_gate"],
        "B_w_up": _B_in["w_up"],
        "B_w_down": _B_in["w_down"],
    }

def reference(A_x, A_Lambda_re, A_Lambda_im, A_B_re, A_B_im, A_C_re, A_C_im, A_log_dt, A_Dskip, B_x, B_w_gate, B_w_up, B_w_down):
    def _A_ref(x, Lambda_re, Lambda_im, B_re, B_im, C_re, C_im, log_dt, Dskip):
        Bsz, L, H = x.shape
        Lam = Lambda_re + 1j * Lambda_im
        Bmat = B_re + 1j * B_im
        Cmat = C_re + 1j * C_im
        dt = torch.exp(log_dt)
        Lam_bar = torch.exp(dt * Lam)
        B_bar = ((Lam_bar - 1.0) / Lam)[:, None] * Bmat
        Bu = torch.einsum("bld,pd->blp", x + 0j, B_bar)
        h = torch.zeros_like(Bu[:, 0, :])
        hs = []
        for t in range(L):
            h = Lam_bar[None, :] * h + Bu[:, t, :]
            hs.append(h)
        hseq = torch.stack(hs, 1)
        y = 2.0 * torch.einsum("blp,dp->bld", hseq, Cmat).real + x * Dskip[None, None, :]
        return y

    def _B_ref(x, w_gate, w_up, w_down):
        g = torch.einsum("bsd,df->bsf", x, w_gate)
        u = torch.einsum("bsd,df->bsf", x, w_up)
        h = _gelu(g) * u
        return torch.einsum("bsf,fd->bsd", h, w_down)

    x = A_x
    xn = _layernorm(x, axis=-1)
    s = _A_ref(xn, A_Lambda_re, A_Lambda_im, A_B_re, A_B_im, A_C_re, A_C_im, A_log_dt, A_Dskip)
    g = _silu(_B_ref(xn, B_w_gate, B_w_up, B_w_down))
    return x + s * g
```

```python
import re

class Emit:
    def __init__(self):
        self.lines = []
        self.vmq = []
        self.uid = 0
    def __call__(self, s):
        for l in s.strip("\n").split("\n"):
            l = l.strip()
            if not l:
                continue
            if l.endswith(":") or l.startswith(".") or l.startswith(";"):
                self.lines.append(l)
            else:
                self.lines.append("    " + l)
    def label(self, base):
        self.uid += 1
        return f"L{base}_{self.uid}"
    def vm(self, instr, tag):
        self(instr)
        self.vmq.append(tag)
    def vm_count_after(self, tags):
        if isinstance(tags, str):
            tags = [tags]
        idx = [i for i, t in enumerate(self.vmq) if t in tags]
        if not idx:
            return None
        return len(self.vmq) - 1 - idx[-1]
    def vm_wait_str(self, tags):
        n = self.vm_count_after(tags)
        if n is None:
            return None
        assert n <= 63, f"vmcnt {n} > 63"
        self.vmq = self.vmq[len(self.vmq) - n:] if n else []
        return f"s_waitcnt vmcnt({n})"
    def vm_wait(self, tags):
        s = self.vm_wait_str(tags)
        if s:
            self(s)
    def vm_wait_all(self):
        self("s_waitcnt vmcnt(0)")
        self.vmq = []
    def text(self):
        return "\n".join(self.lines) + "\n"

def vr(b, n=1):
    return f"v{b}" if n == 1 else f"v[{b}:{b+n-1}]"
def ar(b, n=1):
    return f"a{b}" if n == 1 else f"a[{b}:{b+n-1}]"
def sr(b, n=1):
    return f"s{b}" if n == 1 else f"s[{b}:{b+n-1}]"

REG = re.compile(r"^(-|\|)?([vas])(\d+)$|^(-|\|)?([vas])\[(\d+):(\d+)\]$")
def regs(op):
    op = op.strip()
    if op in ("vcc", "exec"):
        return {op}
    if op == "m0":
        return {"m0"}
    m = REG.match(op)
    if not m:
        return set()
    if m.group(2):
        return {m.group(2) + m.group(3)}
    return {m.group(5) + str(i) for i in range(int(m.group(6)), int(m.group(7)) + 1)}

TRANS = ("v_exp_f32", "v_log_f32", "v_rcp_f32", "v_rsq_f32", "v_sqrt_f32", "v_sin_f32", "v_cos_f32")
def parse(line):
    line = line.split(";")[0].strip()
    if not line or line.endswith(":") or line.startswith("."):
        return None
    parts = line.split(None, 1)
    mn = parts[0]
    ops = []
    if len(parts) > 1:
        depth = 0; cur = ""
        for ch in parts[1] + ",":
            if ch == "[": depth += 1
            if ch == "]": depth -= 1
            if ch == "," and depth == 0:
                ops.append(cur.strip()); cur = ""
            else:
                cur += ch
    mods = ""
    if ops:
        last = ops[-1].split()
        if len(last) > 1:
            ops[-1] = last[0]; mods = " ".join(last[1:])
    ops = [o.split()[0] if o else o for o in ops]
    d = dict(mn=mn, ops=ops, mods=mods, line=line, w=set(), r=set(), kind="other", ws=1)
    R = [regs(o) for o in ops]
    allr = lambda L: set().union(*L) if L else set()
    if mn == "s_nop":
        d["ws"] = int(ops[0], 0) + 1; d["kind"] = "nop"
    elif mn.startswith("v_mfma"):
        d["kind"] = "mfma"; d["w"] = R[0]; d["a"] = R[1]; d["b"] = R[2]; d["c"] = R[3]; d["r"] = R[1] | R[2] | R[3]
        d["pass"] = 8 if "32x32x16" in mn else 4
    elif mn.startswith("v_cmp"):
        d["kind"] = "valu"; d["w"] = R[0]; d["r"] = allr(R[1:])
    elif mn.startswith("v_readfirstlane") or mn.startswith("v_readlane"):
        d["kind"] = "valu"; d["w"] = R[0]; d["r"] = allr(R[1:]); d["lane"] = True
    elif mn.startswith("v_permlane"):
        d["kind"] = "valu"; d["w"] = R[0] | R[1]; d["r"] = R[0] | R[1]; d["perm"] = True
    elif mn.startswith("v_"):
        d["kind"] = "valu"; d["w"] = R[0]; d["r"] = allr(R[1:])
        if mn.startswith(("v_fmac", "v_dot2c")): d["r"] |= R[0]
        if mn.startswith("v_cndmask") and len(ops) == 3: d["r"] |= {"vcc"}
        if "_dpp" in mn or "row_" in mods or "quad_perm" in mods: d["dpp"] = True
        if mn.startswith(TRANS): d["trans"] = True
        if mn.startswith("v_dot2"): d["dot"] = True
    elif mn.startswith("ds_read"):
        d["kind"] = "ds"; d["w"] = R[0]; d["r"] = allr(R[1:])
    elif mn.startswith("ds_write"):
        d["kind"] = "ds"; d["r"] = allr(R)
    elif mn.startswith(("buffer_load", "global_load")):
        d["kind"] = "vmem"
        if "lds" in d["line"].split():
            d["r"] = allr(R) | {"m0"}; d["dma"] = True
        else:
            d["w"] = R[0]; d["r"] = allr(R[1:])
    elif mn.startswith(("buffer_store", "global_store", "buffer_atomic")):
        d["kind"] = "vmem"; d["r"] = allr(R); d["store"] = R[0] if mn.startswith("buffer") else R[1]
        d["wide"] = mn.endswith(("x3", "x4"))
    elif mn.startswith("s_"):
        d["kind"] = "salu"
        if mn.startswith(("s_cmp", "s_cbranch", "s_branch", "s_waitcnt", "s_barrier", "s_endpgm", "s_sleep", "s_setprio")):
            d["r"] = allr(R)
        else:
            d["w"] = R[0] if R else set(); d["r"] = allr(R[1:])
    return d

def check_hazards(text):
    ins = [p for p in (parse(l) for l in text.split("\n")) if p]
    probs = []
    for i, c in enumerate(ins):
        dist = 0
        for j in range(i - 1, max(-1, i - 24), -1):
            p = ins[j]
            need = 0
            pw = p["w"]
            if p["kind"] == "valu":
                vw = {x for x in pw if x[0] in "va" and x not in ("vcc",)}
                sw = {x for x in pw if x[0] == "s" or x == "vcc"}
                if c["kind"] == "mfma" and vw & c["r"]: need = max(need, 2)
                if c.get("perm") and vw & c["r"]: need = max(need, 2)
                if c.get("dpp") and vw & c["r"]: need = max(need, 2)
                if c.get("lane") and vw & c["r"]: need = max(need, 1)
                if p.get("trans") and c["kind"] in ("valu",) and not c.get("trans") and vw & c["r"]: need = max(need, 1)
                if p.get("trans") and c["kind"] in ("mfma", "vmem", "ds") and vw & c["r"]: need = max(need, 1)
                if p.get("dot") and c["kind"] != "nop" and (vw & (c["r"] | c["w"])) and not (c.get("dot") and c["mn"] == p["mn"]): need = max(need, 3)
                if c["kind"] == "valu" and sw & c["r"]: need = max(need, 2)
                if c["kind"] == "vmem" and sw & c["r"]: need = max(need, 5)
                if c["kind"] == "salu" and sw & c["r"]: need = max(need, 1)
            if p["kind"] == "mfma":
                n = {8: 12, 4: 8}[p["pass"]]
                if c["kind"] in ("valu", "vmem", "ds") and pw & (c["r"] | c["w"]): need = max(need, n)
                if c["kind"] == "mfma":
                    if pw & (c["a"] | c["b"]): need = max(need, n)
                    if pw & c["c"] and pw != c["c"]: need = max(need, n - 2)
                    if pw & c["w"] and pw != c["c"]: need = max(need, n - 2)
                if c["kind"] == "valu" and p["c"] & c["w"]: need = max(need, 7)
            if p["kind"] == "salu" and "m0" in pw and c.get("dma"): need = max(need, 1)
            if p["kind"] == "vmem" and p.get("wide") and p.get("store") and (p["store"] & c["w"]):
                need = max(need, 2 if c["kind"] == "valu" else 1)
            if need > dist:
                probs.append(f"hazard need {need} have {dist}: [{p['line']}] -> [{c['line']}]")
            dist += p["ws"]
            if dist >= 20: break
    return probs
```

```python
import sys, math
from asmlib import *

NAME = "recurrent_scan__ssm_conv_s5__glu_gated_geglu__prompt"
KN = NAME + "_kernel"
OPT = dict(stamp=False)
for a_ in sys.argv[2:]:
    k_, _, v_ = a_.partition("=")
    OPT[k_] = (int(v_) if v_ else True)

WS_HH = 0
WS_H = 0x600000
WS_STAT = 0xA00000
WS_R = 0xA10000
WS_AGG = 0xA20000
WS_FLAG = 0xA40000
WS_STAMP = 0xA80000
WS_SIZE = 0xB00000
SLOT = 49152
L_MISC = 3 * SLOT
L_XS = L_MISC
L_XE = L_MISC + 1024
LDS_BYTES = 163840
SPIN = 200000

S_X, S_W, S_WS, S_CRE, S_CIM, S_WD, S_M = 4, 8, 12, 16, 20, 24, 28
P_X, P_LRE, P_LIM, P_BRE, P_BIM, P_CRE, P_CIM, P_LDT = 32, 34, 36, 38, 40, 42, 44, 46
P_D, P_BX, P_WG, P_WU, P_WD, P_OUT, P_DBG, P_WSP = 48, 50, 52, 54, 56, 58, 60, 62
sWAVE, sRB, sCT, sXB, sQ, sC0, sTG, sNG = 64, 65, 66, 67, 68, 69, 70, 71
sXOFF, sWOFF, sWSTEP, sMX, sMW, sPB0, sPB1 = 72, 73, 74, 75, 76, 77, 78
sT0, sT1, sT2, sT3, sCNT, sMASK = 79, 80, 81, 82, 83, 84
sCOFF, sDOFF, sAOFF = 85, 87, 88
sST = 90
sT4, sT5 = 92, 93

vLANE = 1
vCV, vDV = 16, 20
vXV, vWV = 24, 32
vXA0, vXA2, vWA0, vWA2 = 36, 40, 44, 48
vS0, vS1, vST0, vST1 = 52, 53, 54, 55
vREC = 56
vSF = 72
vXF = [80, 104]
vWF = [96, 120]
vACC = 128
def acc(b, c): return vACC + 16 * (2 * b + c)

e = Emit()

def srd(d, base, nbytes):
    e(f"""s_mov_b32 s{d}, s{base}
s_mov_b32 s{d+1}, s{base+1}
s_mov_b32 s{d+2}, {nbytes}
s_mov_b32 s{d+3}, 0x00020000""")

def stamp(i):
    if OPT["stamp"]:
        e(f"s_memrealtime s[{sST}:{sST+1}]\ns_waitcnt lgkmcnt(0)\nv_writelane_b32 v15, s{sST}, {i}")

def stamp_flush():
    if OPT["stamp"]:
        e(f"""s_lshl_b32 s{sT0}, s2, 2
s_add_u32 s{sT0}, s{sT0}, s{sWAVE}
s_lshl_b32 s{sT0}, s{sT0}, 6
s_add_u32 s{sT0}, s{sT0}, {WS_STAMP}
v_min_u32 v14, 15, v{vLANE}
v_lshlrev_b32 v14, 2, v14
s_mov_b64 exec, 0xffff
buffer_store_dword v15, v14, s[{S_WS}:{S_WS+3}], s{sT0} offen
s_mov_b64 exec, -1""")

def spin_poll(vdst, vaddr, srd_, soff, first_loaded=False, n=1, tagregs=None, extra_loads=None):
    L = e.label("poll"); D = e.label("pdone"); C = e.label("pchk")
    e(f"s_mov_b32 s{sCNT}, {SPIN}")
    if first_loaded:
        e(f"s_branch {C}")
    e(f"{L}:")
    e(f"buffer_load_dword v{vdst}, v{vaddr}, s[{srd_}:{srd_+3}], {soff} offen sc1")
    e("s_waitcnt vmcnt(0)")
    e(f"{C}:")
    e(f"""v_cmp_ne_u32 vcc, 0, v{vdst}
s_nop 1
s_cmp_eq_u64 vcc, -1
s_cbranch_scc1 {D}
s_sub_u32 s{sCNT}, s{sCNT}, 1
s_cbranch_scc1 {D}
s_sleep 1
s_branch {L}
{D}:""")
    if not first_loaded:
        e.vmq = []

hdr = open("cdna_kernels/" + NAME + ".s.ref").read().split("; Override launch")[0]
e.lines.append(hdr.rstrip("\n"))
e(f"; @launch grid=(256,1,1) block=(256,1,1) lds={LDS_BYTES}")
e(f""".amdgcn_target "amdgcn-amd-amdhsa--gfx950"
.text
.globl {KN}
.p2align 8
.type {KN},@function
{KN}:""")
e(f"""s_cmp_ge_u32 s2, 256
s_cbranch_scc1 L_end
s_load_dwordx16 s[32:47], s[0:1], 0
s_load_dwordx16 s[48:63], s[0:1], 64
s_getpc_b64 s[{sT0+1}:{sT0+2}]
Lpc0:
v_lshlrev_b32 v2, 7, v0
v_add_u32 v3, 32768, v2
v_min_u32 v2, L_end-Lpc0, v2
v_min_u32 v3, L_end-Lpc0, v3""")
e.vm(f"global_load_dword v126, v2, s[{sT0+1}:{sT0+2}]", "code")
e.vm(f"global_load_dword v127, v3, s[{sT0+1}:{sT0+2}]", "code")
e(f"""v_lshrrev_b32 v2, 6, v0
v_and_b32 v{vLANE}, 63, v0
s_mov_b32 s{sMASK}, 0xffff0000
v_readfirstlane_b32 s{sWAVE}, v2""")
if OPT["stamp"]:
    e("v_mov_b32 v15, 0")
    stamp(0)
e(f"""s_and_b32 s{sXB}, s2, 7
s_lshr_b32 s{sT0}, s2, 3
s_lshr_b32 s{sQ}, s{sT0}, 3
s_and_b32 s{sC0}, s{sT0}, 7
s_and_b32 s{sRB}, s2, 1
s_lshl_b32 s{sRB}, s{sRB}, 2
s_and_b32 s{sT1}, s{sT0}, 3
s_add_u32 s{sRB}, s{sRB}, s{sT1}
s_lshr_b32 s{sT0}, s{sT0}, 2
s_lshr_b32 s{sT1}, s{sXB}, 1
s_and_b32 s{sTG}, s{sWAVE}, 1
s_lshr_b32 s{sNG}, s{sWAVE}, 1
s_mul_i32 s{sPB1}, s{sWAVE}, 12288
s_add_u32 s{sPB0}, s{sPB1}, {2*SLOT}
s_lshl_b32 s{sMX}, s{sWAVE}, 13
s_lshl_b32 s{sMW}, s{sWAVE}, 12
s_add_u32 s{sMW}, s{sMW}, 32768""")
e(f"""v_lshrrev_b32 v6, 3, v{vLANE}
v_and_b32 v7, 7, v{vLANE}
v_lshrrev_b32 v8, 4, v{vLANE}
v_xor_b32 v9, v7, v8
v_lshlrev_b32 v9, 4, v9
v_xor_b32 v10, 64, v9""")
e(f"""s_lshl_b32 s{sT2}, s{sRB}, 8
s_lshl_b32 s{sT3}, s{sWAVE}, 6
s_add_u32 s{sT2}, s{sT2}, s{sT3}
v_add_u32 v11, s{sT2}, v6
v_lshlrev_b32 v11, 10, v11
v_add_u32 v12, v11, v9
v_add_u32 v13, v11, v10""")
for i in range(8):
    e(f"v_add_u32 v{vXV+i}, {8192*i - 1024*(i&3)}, v{12 + (i&1)}")
e(f"""s_lshl_b32 s{sT2}, s{sC0}, 6
v_add_u32 v11, s{sT2}, v6
v_lshlrev_b32 v11, 10, v11
v_add_u32 v12, v11, v9
v_add_u32 v13, v11, v10""")
for i in range(4):
    e(f"v_add_u32 v{vCV+i}, {7168*i}, v{12 + (i&1)}")
e(f"""v_and_b32 v11, 1, v8
v_lshlrev_b32 v11, 2, v11
v_xor_b32 v11, v11, v7
v_lshlrev_b32 v14, 4, v11
s_lshl_b32 s{sT2}, s{sC0}, 7
v_lshl_add_u32 v11, v6, 10, v14
v_add_u32 v11, s{sT2}, v11""")
for i in range(4):
    e(f"v_add_u32 v{vDV+i}, {7168*i}, v11")
e("s_waitcnt lgkmcnt(0)")
srd(S_X, P_X, 2097152)
srd(S_WS, P_WSP, WS_SIZE)
srd(S_CRE, P_CRE, 524288)
srd(S_CIM, P_CIM, 524288)
srd(S_WD, P_WD, 1376 * 1024)
e(f"""s_mov_b32 s{sXOFF}, 0
s_mov_b32 s{sWOFF}, 0
s_lshl_b32 s{sCOFF}, s{sWAVE}, 8
s_lshl_b32 s{sT2}, s{sTG}, 15
s_add_u32 s{sCOFF+1}, s{sCOFF}, 32768
s_sub_u32 s{sCOFF+1}, s{sCOFF+1}, s{sT2}
s_add_u32 s{sCOFF}, s{sCOFF}, s{sT2}
s_mul_i32 s{sDOFF}, s{sWAVE}, {352*1024}
s_cmp_lt_u32 s{sT0}, 2
s_cbranch_scc1 L_ssm
s_mul_i32 s{sT1}, s{sT1}, 6
s_add_u32 s{sCT}, s{sT1}, s{sT0}
s_sub_u32 s{sCT}, s{sCT}, 2
s_cmp_ge_u32 s{sCT}, 22
s_cbranch_scc1 L_stats""")

def dma_stage(stage):
    sb = (stage % 3) * SLOT
    out = []
    for i in range(8):
        if i % 4 == 0:
            out.append((f"s_add_u32 m0, s{sMX}, {sb + 4096*(i>>2)}", None))
            out.append(("s_nop 0", "pad"))
        out.append((f"buffer_load_dwordx4 v{vXV+i}, s[{S_X}:{S_X+3}], s{sXOFF} offen offset:{1024*(i&3)} lds", f"st{stage}"))
    out.append((f"s_add_u32 m0, s{sMW}, {sb}", None))
    out.append((f"s_add_u32 s{sXOFF}, s{sXOFF}, 128", None))
    for i in range(4):
        out.append((f"buffer_load_dwordx4 v{vWV+i}, s[{S_W}:{S_W+3}], s{sWOFF} offen offset:{1024*i} lds", f"st{stage}"))
    out.append((f"s_add_u32 s{sWOFF}, s{sWOFF}, s{sWSTEP}", None))
    return out

def emit_list(lst):
    for s, tag in lst:
        if tag and tag != "pad":
            e.vm(s, tag)
        else:
            e(s)

def pos_m0(pos):
    p, k = pos
    return (sPB0, 4096 * k) if p == 0 else (sPB1, 4096 * k + (SLOT if p == 2 else 0))
CPOS = {u: (u // 3, u % 3) for u in range(8)}
DPOS = {0: (2, 2), 1: (0, 0), 2: (0, 1), 3: (0, 2), 4: (1, 0), 5: (1, 1), 6: (1, 2), 7: (2, 0), 8: (2, 1), 9: (2, 2), 10: (0, 0)}
def dma_cunit(u):
    sub, dblk = u >> 1, u & 1
    ph, ci = sub >> 1, sub & 1
    sb, off = pos_m0(CPOS[u])
    s = S_CIM if ci else S_CRE
    out = [(f"s_add_u32 m0, s{sb}, {off}", None), (f"s_add_u32 s{sT0}, s{sCOFF+dblk}, {128*ph}", None)]
    for i in range(4):
        out.append((f"buffer_load_dwordx4 v{vCV+i}, s[{s}:{s+3}], s{sT0} offen offset:{1024*i} lds", f"C{u}"))
    return out
def dma_dunit(u):
    sb, off = pos_m0(DPOS[u])
    out = [(f"s_add_u32 m0, s{sb}, {off}", None), (f"s_add_u32 s{sT0}, s{sDOFF}, {32768*u}", None)]
    for i in range(4):
        out.append((f"buffer_load_dwordx4 v{vDV+i}, s[{S_WD}:{S_WD+3}], s{sT0} offen offset:{1024*i} lds", f"D{u}"))
    return out
A_C = 0
A_DN = 128
A_Y = 192
def read_cunit(u, vca, vca2):
    sub, dblk = u >> 1, u & 1
    ph, ci = sub >> 1, sub & 1
    p, k = CPOS[u]
    base = vca2 if p == 0 else vca
    off = 4096 * k + (SLOT if p == 2 else 0)
    out = []
    for jp in range(4):
        ksl = 4 * (2 * ph + (jp >> 1)) + 2 * ci + (jp & 1)
        out.append(f"ds_read_b128 {ar(A_C + 8*ksl + 4*dblk, 4)}, v{base+jp} offset:{off}")
    return out
def dfrag_reads(u, jj, dblk, dst, vda, vda2):
    p, k = DPOS[u]
    base = vda2 if p == 0 else vda
    off = 4096 * k + (SLOT if p == 2 else 0) + 2048 * jj
    return [f"ds_read_b64_tr_b16 {dst(2*ee)}, v{base+dblk} offset:{off + 1024*ee}" for ee in range(2)]
def read_dunit_agpr(u, vda, vda2):
    out = []
    for jj in range(2):
        for dblk in range(2):
            r0 = A_Y + 8 * (2 * u + jj) + 4 * dblk
            out += dfrag_reads(u, jj, dblk, lambda o: ar(r0 + o, 2), vda, vda2)
    return out
def calc_b_read_addrs(vca, vca2, vda, vda2, t):
    e(f"""v_and_b32 v{t}, 31, v{vLANE}
v_lshrrev_b32 v{t+1}, 5, v{vLANE}
v_bfe_u32 v{t+2}, v{vLANE}, 1, 3
v_xor_b32 v{t+2}, v{t+2}, v{t+1}
v_lshlrev_b32 v{t}, 7, v{t}
v_add_u32 v{t}, s{sPB1}, v{t}""")
    for j in range(4):
        e(f"""v_xor_b32 v{t+3}, {2*j}, v{t+2}
v_lshl_add_u32 v{vca+j}, v{t+3}, 4, v{t}
v_add_u32 v{vca2+j}, {2*SLOT}, v{vca+j}""")
    e(f"""v_bfe_u32 v{t}, v{vLANE}, 2, 2
v_lshl_add_u32 v{t}, v{t+1}, 2, v{t}
v_lshlrev_b32 v{t}, 7, v{t}
v_add_u32 v{t}, s{sPB1}, v{t}
v_bfe_u32 v{t+2}, v{vLANE}, 4, 1
v_lshl_add_u32 v{t}, v{t+2}, 5, v{t}
v_and_b32 v{t+2}, 3, v{vLANE}
v_lshl_add_u32 v{t}, v{t+2}, 3, v{t}
v_bfe_u32 v{t+2}, v{vLANE}, 3, 1
v_xor_b32 v{t+2}, s{sTG}, v{t+2}
v_lshl_add_u32 v{vda}, v{t+2}, 6, v{t}
v_xor_b32 v{vda+1}, 64, v{vda}
v_add_u32 v{vda2}, {2*SLOT}, v{vda}
v_add_u32 v{vda2+1}, {2*SLOT}, v{vda+1}""")

def x_lds_addrs(tau0_code):
    e(tau0_code)
    e(f"""v_lshrrev_b32 v3, 5, v{vLANE}
v_bfe_u32 v4, v2, 1, 3
v_xor_b32 v4, v4, v3
s_lshl_b32 s{sT2}, s{sTG}, 14
v_lshlrev_b32 v2, 7, v2
v_add_u32 v2, s{sT2}, v2
s_lshl_b32 s{sT2}, s{sTG}, 1
v_xor_b32 v4, s{sT2}, v4""")
    for j in range(4):
        e(f"""v_xor_b32 v5, {2*j}, v4
v_lshl_add_u32 v{vXA0+j}, v5, 4, v2
v_add_u32 v{vXA2+j}, {2*SLOT}, v{vXA0+j}""")

def frag_reads(role, stage, j, st):
    slot = stage % 3
    so = 0 if slot == 2 else slot * SLOT
    xa = vXA2 if slot == 2 else vXA0
    wa = vWA2 if slot == 2 else vWA0
    out = []
    wr = []
    for c in range(2):
        if role == "ssm":
            wr.append(f"ds_read_b128 {vr(vWF[st]+4*c, 4)}, v{wa+j} offset:{so + 8192*c}")
        else:
            for ee in range(2):
                wr.append(f"ds_read_b64_tr_b16 {vr(vWF[st]+4*c+2*ee, 2)}, v{wa+(j&1)} offset:{so + 8192*c + 2048*j + 512*ee}")
    xr = [f"ds_read_b128 {vr(vXF[st]+4*b, 4)}, v{xa+j} offset:{so + 2048*b}" for b in range(4)]
    return xr, wr

def s_ops(st):
    out = []
    for c in range(2):
        for d in range(4):
            w = vWF[st] + 4 * c + d
            s = vS0 + c
            out += [f"v_lshlrev_b32 v{vST0}, 16, v{w}", f"v_and_b32 v{vST1}, s{sMASK}, v{w}",
                    f"v_add_f32 v{s}, v{s}, v{vST0}", f"v_add_f32 v{s}, v{s}, v{vST1}"]
    return out

def mfmas(role, st, first):
    out = []
    for b in range(4):
        for c in range(2):
            A = vr(vWF[st] + 4 * c, 4); B = vr(vXF[st] + 4 * b, 4)
            if role == "ssm":
                A, B = B, A
            D = vr(acc(b, c), 16)
            out.append(f"v_mfma_f32_32x32x16_bf16 {D}, {A}, {B}, {'0' if first else D}")
    return out

def interleave(ms, fill, per_gap=None):
    n = len(ms)
    k = 0
    for i, m in enumerate(ms):
        e(m)
        upto = math.ceil(len(fill) * (i + 1) / n) if per_gap is None else min(len(fill), per_gap * (i + 1))
        if i == n - 1:
            upto = len(fill)
        while k < upto:
            s, tag = fill[k]
            if callable(s):
                s()
            elif tag and tag != "pad":
                e.vm(s, tag)
            else:
                e(s)
            k += 1

def main_loop(role, hooks):
    emit_list(dma_stage(0))
    e("s_barrier")
    emit_list(dma_stage(1))
    e("s_barrier")
    emit_list(dma_stage(2))
    hooks.get("pre", lambda: None)()
    e(f"v_mov_b32 v{vS0}, 0\nv_mov_b32 v{vS1}, 0")
    e.vm_wait("st0")
    e("s_barrier")
    stamp(1)
    xr, wr = frag_reads(role, 0, 0, 0)
    for s in wr + xr:
        e(s)
    for ks in range(32):
        stage, j = ks // 4, ks % 4
        st = ks & 1
        e("s_waitcnt lgkmcnt(0)")
        fill = []
        if j == 3:
            fill += hooks.get(("pre_bar", stage), lambda: [])()
            if stage < 7:
                fill.append((lambda stage=stage: e.vm_wait(hooks.get(("wait", stage), [f"st{stage+1}"])), None))
            fill.append(("s_barrier", None))
        if ks < 31:
            ns, nj = (ks + 1) // 4, (ks + 1) % 4
            xr, wr = frag_reads(role, ns, nj, st ^ 1)
            if j & 1:
                rd = [(s, None) for s in xr + wr]
            else:
                rd = [(s, None) for s in wr + xr]
        else:
            rd = []
        if j & 1 == 0:
            so = [(s, None) for s in s_ops(st)]
            mix = []
            for i in range(max(len(rd), len(so) // 4)):
                if i < len(rd): mix.append(rd[i])
                mix += so[4 * i:4 * i + 4]
            fill += mix
        else:
            fill += rd
        if j == 3:
            if stage + 3 < 8:
                fill += [x for x in dma_stage(stage + 3) if x[1] != "pad" or True]
            fill += hooks.get(("post_bar", stage), lambda: [])()
        interleave(mfmas(role, st, ks == 0), fill)
    stamp(2)

def s_finish_write():
    return [("s_nop 0", None), (f"v_permlane32_swap_b32 v{vS0}, v{vS1}", None), ("s_nop 0", None),
            (f"v_add_f32 v{vS0}, v{vS0}, v{vS1}", None),
            (f"s_lshl_b32 s{sT2}, s{sWAVE}, 8", None),
            (f"v_lshl_add_u32 v{vST0}, v{vLANE}, 2, s{sT2}", None),
            (f"v_xor_b32 v{vST1}, 256, v{vST0}", None),
            (f"v_add_u32 v{vST0}, {L_XS}, v{vST0}", None),
            (f"v_add_u32 v{vST1}, {L_XS}, v{vST1}", None),
            (f"ds_write_b32 v{vST0}, v{vS0}", None), ("s_waitcnt lgkmcnt(0)", None)]
def s_finish_read():
    return [(f"ds_read_b32 v{vS1}, v{vST1}", None)]
def s_make_frags():
    e(f"""s_waitcnt lgkmcnt(0)
v_add_f32 v{vS0}, v{vS0}, v{vS1}
v_cmp_gt_u32 vcc, 32, v{vLANE}
v_cvt_pk_bf16_f32 v{vST0}, v{vS0}, v{vS0}
v_and_b32 v{vST1}, s{sMASK}, v{vST0}
v_sub_f32 v{vST1}, v{vS0}, v{vST1}
v_cvt_pk_bf16_f32 v{vST1}, v{vST1}, v{vST1}
v_cndmask_b32 v{vSF}, 0, v{vST0}, vcc
v_cndmask_b32 v{vSF+1}, 0, v{vST1}, vcc
v_cndmask_b32 v{vSF+4}, v{vST0}, 0, vcc
v_cndmask_b32 v{vSF+5}, v{vST1}, 0, vcc
v_mov_b32 v{vSF+2}, 0
v_mov_b32 v{vSF+3}, 0
v_mov_b32 v{vSF+6}, 0
v_mov_b32 v{vSF+7}, 0""")

def dbg_poll_issue():
    def f():
        srd(S_M, P_DBG, 256)
        e(f"v_min_u32 v2, 15, v{vLANE}\nv_lshlrev_b32 v2, 2, v2")
        e.vm(f"buffer_load_dword v3, v2, s[{S_M}:{S_M+3}], 0 offen sc1", "dbg")
    return [(f, None)]
def dbg_poll_check():
    spin_poll(3, 2, S_M, "0", first_loaded=True)

def flag_store(slot_code):
    e(slot_code)
    e(f"""s_lshl_b32 s{sT1}, s{sRB}, 1
s_add_u32 s{sT1}, s{sT1}, s{sTG}
s_lshl_b32 s{sT1}, s{sT1}, 6
s_add_u32 s{sT0}, s{sT0}, s{sT1}
s_lshl_b32 s{sT0}, s{sT0}, 7
s_add_u32 s{sT0}, s{sT0}, {WS_FLAG}
v_mov_b32 v2, 0
v_mov_b32 v3, 1
s_mov_b64 exec, 1""")
    e.vm(f"buffer_store_dword v3, v2, s[{S_WS}:{S_WS+3}], s{sT0} offen sc1", "flag")
    e("s_mov_b64 exec, -1")

LOG2E = 1.4426950408889634
def fbits(x):
    import struct
    return "0x%08x" % struct.unpack("<I", struct.pack("<f", x))[0]

def cfma(dst, x, y, z, tmp):
    e(f"v_pk_fma_f32 {vr(tmp,2)}, {vr(x,2)}, {vr(y,2)}, {vr(z,2)} op_sel:[1,1,0] op_sel_hi:[0,1,1] neg_lo:[0,1,0]")
    e(f"v_pk_fma_f32 {vr(dst,2)}, {vr(x,2)}, {vr(y,2)}, {vr(tmp,2)} op_sel:[0,0,0] op_sel_hi:[1,0,1]")
def cmul(dst, x, y, tmp):
    e(f"v_pk_mul_f32 {vr(tmp,2)}, {vr(x,2)}, {vr(y,2)} op_sel:[1,1] op_sel_hi:[0,1] neg_lo:[0,1]")
    e(f"v_pk_fma_f32 {vr(dst,2)}, {vr(x,2)}, {vr(y,2)}, {vr(tmp,2)} op_sel:[0,0,0] op_sel_hi:[1,0,1]")

def mfrag_fix():
    for b in range(4):
        T = vREC + 4 * b
        e(f"v_mov_b32 v{T+1}, v{T}\nv_mov_b32 v{T+2}, 0\nv_mov_b32 v{T+3}, 0")
def rank1(role):
    for b in range(4):
        for c in range(2):
            A = vr(vSF + 4 * c, 4); B = vr(vREC + 4 * b, 4)
            if role == "ssm":
                A, B = B, A
            D = vr(acc(b, c), 16)
            e(f"v_mfma_f32_32x32x16_bf16 {D}, {A}, {B}, {D}")

vm_entry = list(e.vmq)
e(f"""s_cmp_lt_u32 s{sWAVE}, 2
s_cselect_b32 s{S_W}, s{P_WG}, s{P_WU}
s_cselect_b32 s{S_W+1}, s{P_WG+1}, s{P_WU+1}
s_mov_b32 s{S_W+2}, {512*2752}
s_mov_b32 s{S_W+3}, 0x00020000
s_mov_b32 s{sWSTEP}, {64*2752}
s_lshl_b32 s{sT2}, s{sTG}, 5
v_add_u32 v11, s{sT2}, v6
v_mul_u32_u24 v11, 2752, v11
s_lshl_b32 s{sT2}, s{sCT}, 7
v_add3_u32 v11, v11, v14, s{sT2}""")
for i in range(4):
    e(f"v_add_u32 v{vWV+i}, {8*2752*i - 1024*i}, v11")
def glu_pre():
    x_lds_addrs(f"""v_bfe_u32 v2, v{vLANE}, 4, 1
v_and_b32 v3, 15, v{vLANE}
v_lshl_add_u32 v2, v2, 6, v3""")
    e(f"""v_lshrrev_b32 v2, 5, v{vLANE}
v_bfe_u32 v3, v{vLANE}, 2, 2
v_lshl_add_u32 v2, v2, 3, v3
v_lshlrev_b32 v2, 7, v2
v_bfe_u32 v3, v{vLANE}, 4, 1
v_lshl_add_u32 v2, v3, 5, v2
v_and_b32 v3, 3, v{vLANE}
v_lshl_add_u32 v2, v3, 3, v2
v_bfe_u32 v3, v{vLANE}, 3, 1
v_xor_b32 v3, s{sNG}, v3
v_lshl_add_u32 v2, v3, 6, v2
s_lshl_b32 s{sT2}, s{sTG}, 11
s_add_u32 s{sT3}, s{sT2}, 32768
s_sub_u32 s{sT2}, 32768, s{sT2}
v_add_u32 v{vWA0}, s{sT3}, v2
v_add_u32 v{vWA0+1}, s{sT2}, v2
v_add_u32 v{vWA2}, {2*SLOT}, v{vWA0}
v_add_u32 v{vWA2+1}, {2*SLOT}, v{vWA0+1}""")
def stat_soff():
    e(f"""s_lshl_b32 s{sT2}, s{sRB}, 1
s_add_u32 s{sT2}, s{sT2}, s{sTG}
s_lshl_b32 s{sT3}, s{sT2}, 9
s_add_u32 s{sT3}, s{sT3}, {WS_R}
s_lshl_b32 s{sT2}, s{sT2}, 11
s_add_u32 s{sT2}, s{sT2}, {WS_STAT}""")
def glu_stats_load():
    dbg_poll_check()
    stat_soff()
    e(f"""v_bfe_u32 v4, v{vLANE}, 4, 1
v_and_b32 v5, 15, v{vLANE}
v_lshl_add_u32 v4, v4, 6, v5
v_lshlrev_b32 v4, 4, v4""")
    for b in range(4):
        e.vm(f"buffer_load_dwordx4 {vr(vREC+4*b,4)}, v4, s[{S_WS}:{S_WS+3}], s{sT2} offen offset:{256*b} sc1", "stats")
hooks = {"pre": glu_pre,
         ("post_bar", 5): dbg_poll_issue, ("wait", 6): ["st7", "dbg"],
         ("post_bar", 6): lambda: [(glu_stats_load, None)],
         ("pre_bar", 7): s_finish_write, ("post_bar", 7): s_finish_read}
main_loop("glu", hooks)
s_make_frags()
e.vm_wait("stats")
C1 = -2.0 * math.sqrt(2.0 / math.pi) * LOG2E
vK = 80
for b in range(4):
    T = vREC + 4 * b; K = vK + 4 * b
    e(f"""v_mul_f32 v{K}, {fbits(C1)}, v{T+1}
v_mul_f32 v{K+1}, v{T+1}, v{T+1}
v_mov_b32 v{K+2}, v{T+2}
v_mul_f32 v{K+1}, {fbits(0.044715)}, v{K+1}
v_mul_f32 v{K+1}, v{K+1}, v{K}""")
mfrag_fix()
e("s_nop 1")
rank1("glu")
e(f"""s_lshl_b32 s{sT0}, s{sCT}, 1
s_add_u32 s{sT0}, s{sT0}, s{sNG}
s_lshl_b32 s{sT1}, s{sRB}, 1
s_add_u32 s{sT1}, s{sT1}, s{sTG}
s_mul_i32 s{sT1}, s{sT1}, {2*86*2048}
s_lshl_b32 s{sT2}, s{sT0}, 12
s_add_u32 s{sAOFF}, s{sT1}, s{sT2}
s_add_u32 s{sT4}, s{sAOFF}, {86*2048}
s_cmp_eq_u32 s{sT0}, 43
s_cselect_b32 s{sT2}, 0x7f000000, 0
v_lshl_add_u32 v2, v{vLANE}, 4, s{sT2}
s_nop 1""")
stamp(3)
TA, TB, WA, WB = 96, 98, 100, 102
vO = [104, 112]
for b in range(4):
    K = vK + 4 * b; O = vO[b & 1]
    for i in range(0, 8, 2):
        zA, zB = acc(b, 0) + 2 * i, acc(b, 0) + 2 * i + 2
        uA, uB = acc(b, 1) + 2 * i, acc(b, 1) + 2 * i + 2
        for T, z in ((TA, zA), (TB, zB)):
            e(f"v_pk_mul_f32 {vr(T,2)}, {vr(z,2)}, {vr(z,2)}")
        for T in (TA, TB):
            e(f"v_pk_fma_f32 {vr(T,2)}, {vr(T,2)}, {vr(K,2)}, {vr(K,2)} op_sel:[0,1,0] op_sel_hi:[1,1,0]")
        for T, z in ((TA, zA), (TB, zB)):
            e(f"v_pk_mul_f32 {vr(T,2)}, {vr(T,2)}, {vr(z,2)}")
        for r in (TA, TA + 1, TB, TB + 1):
            e(f"v_exp_f32 v{r}, v{r}")
        for W, z, u in ((WA, zA, uA), (WB, zB, uB)):
            e(f"v_pk_mul_f32 {vr(W,2)}, {vr(z,2)}, {vr(u,2)}")
        for T in (TA, TB):
            e(f"v_pk_fma_f32 {vr(T,2)}, {vr(T,2)}, {vr(K+2,2)}, {vr(K+2,2)} op_sel:[0,0,0] op_sel_hi:[1,0,0]")
        for r in (TA, TA + 1, TB, TB + 1):
            e(f"v_rcp_f32 v{r}, v{r}")
        for W, T in ((WA, TA), (WB, TB)):
            e(f"v_pk_mul_f32 {vr(W,2)}, {vr(W,2)}, {vr(T,2)}")
        e(f"v_cvt_pk_bf16_f32 v{O+i}, v{WA}, v{WA+1}")
        e(f"v_cvt_pk_bf16_f32 v{O+i+1}, v{WB}, v{WB+1}")
        if i in (2, 6):
            fr = i >> 2
            so = sAOFF if b < 2 else sT4
            e.vm(f"buffer_store_dwordx4 {vr(O+4*fr,4)}, v2, s[{S_WS}:{S_WS+3}], s{so} offen offset:{1024*(b&1) + 2048*fr} sc1", "hh")
stamp(4)
e.vm_wait_all()
flag_store(f"s_lshl_b32 s{sT0}, s{sCT}, 1\ns_add_u32 s{sT0}, s{sT0}, s{sNG}")
stamp(5)
e("s_branch L_phase2")

e.vmq = list(vm_entry)
e("L_ssm:")
vA, vCF, vq, vQ = 8, 10, 12, 6
e(f"""s_lshl_b32 s{sT1}, s{sT1}, 1
s_add_u32 s{sCT}, s{sT1}, s{sT0}
s_cmp_lt_u32 s{sWAVE}, 2
s_cselect_b32 s{S_W}, s{P_BRE}, s{P_BIM}
s_cselect_b32 s{S_W+1}, s{P_BRE+1}, s{P_BIM+1}
s_mov_b32 s{S_W+2}, 524288
s_mov_b32 s{S_W+3}, 0x00020000
s_mov_b32 s{sWSTEP}, 128
s_lshl_b32 s{sT2}, s{sTG}, 5
s_lshl_b32 s{sT3}, s{sCT}, 6
s_add_u32 s{sT2}, s{sT2}, s{sT3}
v_add_u32 v11, s{sT2}, v6
v_lshlrev_b32 v11, 10, v11
v_add_u32 v12, v11, v9
v_add_u32 v13, v11, v10""")
for i in range(4):
    e(f"v_add_u32 v{vWV+i}, {7168*i}, v{12 + (i&1)}")
e(f"""v_and_b32 v14, 19, v{vLANE}
v_bfe_u32 v2, v{vLANE}, 2, 1
v_lshl_or_b32 v14, v2, 3, v14
v_bfe_u32 v2, v{vLANE}, 3, 1
v_lshl_or_b32 v14, v2, 2, v14
s_lshl_b32 s{sT2}, s{sNG}, 5
v_add_u32 v14, s{sT2}, v14
v_add_u32 v2, s{sT3}, v14
v_lshlrev_b32 v2, 1, v2""")
for k_, (p, r) in enumerate(((P_LRE, vREC), (P_LIM, vREC + 1), (P_LDT, vREC + 2))):
    srd(S_M, p, 1024)
    e.vm(f"buffer_load_ushort v{r}, v2, s[{S_M}:{S_M+3}], 0 offen", "cst")
def ssm_pre():
    x_lds_addrs(f"""v_bfe_u32 v2, v{vLANE}, 2, 1
v_and_b32 v3, 3, v{vLANE}
v_lshl_add_u32 v2, v2, 6, v3
v_bfe_u32 v3, v{vLANE}, 3, 2
v_lshl_add_u32 v2, v3, 2, v2""")
    e(f"""v_lshrrev_b32 v3, 5, v{vLANE}
v_bfe_u32 v4, v14, 1, 3
v_xor_b32 v4, v4, v3
s_lshl_b32 s{sT2}, s{sTG}, 1
v_xor_b32 v4, s{sT2}, v4
v_lshlrev_b32 v2, 7, v14
v_add_u32 v2, 32768, v2""")
    for j in range(4):
        e(f"""v_xor_b32 v5, {2*j}, v4
v_lshl_add_u32 v{vWA0+j}, v5, 4, v2
v_add_u32 v{vWA2+j}, {2*SLOT}, v{vWA0+j}""")
    e.vm_wait("cst")
    lre, lim, t0, t1, t2, t3 = vREC, vREC + 1, vREC + 2, vREC + 3, vREC + 4, vREC + 5
    e(f"""v_lshlrev_b32 v{lre}, 16, v{lre}
v_lshlrev_b32 v{lim}, 16, v{lim}
v_lshlrev_b32 v{t0}, 16, v{t0}
v_mul_f32 v{t0}, {fbits(LOG2E)}, v{t0}
v_exp_f32 v{t0}, v{t0}
s_nop 0
v_cvt_pk_bf16_f32 v{t0}, v{t0}, v{t0}
v_and_b32 v{t0}, s{sMASK}, v{t0}
v_mul_f32 v{t1}, v{t0}, v{lre}
v_mul_f32 v{t2}, v{t0}, v{lim}
v_mul_f32 v{t1}, {fbits(LOG2E)}, v{t1}
v_mul_f32 v{t2}, {fbits(1/(2*math.pi))}, v{t2}
v_exp_f32 v{t1}, v{t1}
v_rndne_f32 v{t3}, v{t2}
v_sub_f32 v{t2}, v{t2}, v{t3}
v_cos_f32 v{t3}, v{t2}
v_sin_f32 v{t2}, v{t2}
v_mul_f32 v{vA}, v{t1}, v{t3}
v_mul_f32 v{t0}, v{lre}, v{lre}
v_mul_f32 v{vA+1}, v{t1}, v{t2}
v_fmac_f32 v{t0}, v{lim}, v{lim}
v_add_f32 v{t1}, -1.0, v{vA}
v_rcp_f32 v{t0}, v{t0}
v_mul_f32 v{t2}, v{t1}, v{lre}
v_mul_f32 v{t3}, v{vA+1}, v{lre}
v_fmac_f32 v{t2}, v{vA+1}, v{lim}
v_fma_f32 v{t3}, -v{t1}, v{lim}, v{t3}
v_add_f32 v{t0}, v{t0}, v{t0}
v_mul_f32 v{vCF}, v{t2}, v{t0}
v_mul_f32 v{vCF+1}, v{t3}, v{t0}""")
    cmul(vq, vA, vA, 2)
    for _ in range(5):
        cmul(4, vq, vq, 2)
        e(f"v_mov_b32 v{vq}, v4\nv_mov_b32 v{vq+1}, v5")
    cmul(4, vq, vq, 2)
    cmul(vQ, 4, 4, 2)
def ssm_stats_load():
    dbg_poll_check()
    stat_soff()
    e(f"""v_bfe_u32 v4, v{vLANE}, 2, 1
v_and_b32 v5, 3, v{vLANE}
v_lshl_add_u32 v4, v4, 6, v5
v_bfe_u32 v5, v{vLANE}, 3, 2
v_lshl_add_u32 v4, v5, 2, v4
v_lshlrev_b32 v4, 4, v4""")
    for b in range(4):
        e.vm(f"buffer_load_dword v{vREC+4*b}, v4, s[{S_WS}:{S_WS+3}], s{sT2} offen offset:{256*b} sc1", "stats")
    e(f"s_mov_b32 s{sT5}, s{sT3}")
hooks = {"pre": ssm_pre,
         ("post_bar", 5): dbg_poll_issue, ("wait", 6): ["st7", "dbg"],
         ("post_bar", 6): lambda: [(ssm_stats_load, None)],
         ("pre_bar", 7): s_finish_write, ("post_bar", 7): s_finish_read}
main_loop("ssm", hooks)
s_make_frags()
e.vm_wait("stats")
mfrag_fix()
e(f"v_lshrrev_b32 v4, 5, v{vLANE}\nv_lshlrev_b32 v4, 8, v4")
rank1("ssm")
vR = 24
for b in range(4):
    for g in range(4):
        e.vm(f"buffer_load_dwordx4 {vr(vR+16*b+4*g,4)}, v4, s[{S_WS}:{S_WS+3}], s{sT5} offen offset:{64*b+16*g} sc1", "r")
stamp(3)
def Ub(b): return 96 if b == 0 else acc(b - 1, 0)
for b in range(4):
    for r in range(16):
        U = Ub(b) + 2 * r; o = r & 1
        e(f"v_pk_mul_f32 {vr(U,2)}, {vr(acc(b,0)+(r&~1),2)}, {vr(vCF,2)} op_sel:[{o},0] op_sel_hi:[{o},1]")
    for r in range(16):
        U = Ub(b) + 2 * r; o = r & 1
        e(f"v_pk_fma_f32 {vr(U,2)}, {vr(acc(b,1)+(r&~1),2)}, {vr(vCF,2)}, {vr(U,2)} op_sel:[{o},1,0] op_sel_hi:[{o},0,1] neg_lo:[0,1,0]")
e.vm_wait("r")
for t in range(64):
    b, r = t >> 4, t & 15
    U = Ub(b) + 2 * r; o = t & 1
    e(f"v_pk_mul_f32 {vr(U,2)}, {vr(U,2)}, {vr(vR+(t&~1),2)} op_sel:[0,{o}] op_sel_hi:[1,{o}]")
    if t == 1:
        cfma(4, Ub(0), vA, U, 2)
    elif t > 1:
        cfma(4, 4, vA, U, 2)
vE = 88
e(f"""v_and_b32 v24, 31, v{vLANE}
s_lshl_b32 s{sT0}, s{sNG}, 8
s_add_u32 s{sT0}, s{sT0}, {L_XE}
v_lshl_add_u32 v24, v24, 3, s{sT0}
v_lshrrev_b32 v25, 5, v{vLANE}
s_lshl_b32 s{sT0}, s{sTG}, 10
v_lshl_add_u32 v25, v25, 9, s{sT0}
v_add_u32 v25, v25, v24
ds_write_b64 v25, v[4:5]
s_waitcnt lgkmcnt(0)
s_barrier""")
for s_ in range(4):
    e(f"ds_read_b64 {vr(vE+2*s_,2)}, v24 offset:{512*s_}")
e(f"""s_lshl_b32 s{sT0}, s{sCT}, 1
s_add_u32 s{sT0}, s{sT0}, s{sNG}
s_lshl_b32 s{sT0}, s{sT0}, 9
v_and_b32 v26, 31, v{vLANE}
v_lshl_add_u32 v26, v26, 4, s{sT0}
s_lshl_b32 s{sT4}, s{sRB}, 13
s_add_u32 s{sT4}, s{sT4}, {WS_AGG}
s_waitcnt lgkmcnt(0)""")
P2, P3, AG = 28, 30, 32
cfma(P2, vE, vq, vE + 2, 2)
cfma(P3, P2, vq, vE + 4, 2)
cfma(AG, P3, vq, vE + 6, 2)
Lnp = e.label("nopub")
e(f"""v_mov_b32 v36, v{AG}
v_mov_b32 v37, 1
v_mov_b32 v38, v{AG+1}
v_mov_b32 v39, 1
s_cmp_eq_u32 s{sTG}, 0
s_cbranch_scc0 {Lnp}
s_mov_b32 exec_hi, 0
buffer_store_dwordx4 v[36:39], v26, s[{S_WS}:{S_WS+3}], s{sT4} offen sc1
s_mov_b64 exec, -1
{Lnp}:""")
stamp(4)
vM, vPd, q2, q3 = 252, 254, 40, 42
cmul(q2, vq, vq, 2)
cmul(q3, q2, vq, 2)
e(f"""s_cmp_eq_u32 s{sTG}, 1
s_cselect_b64 vcc, -1, 0
v_cndmask_b32 v44, 1.0, v{q2}, vcc
v_cndmask_b32 v45, 0, v{q2+1}, vcc
v_cndmask_b32 v46, 0, v{P2}, vcc
v_cndmask_b32 v47, 0, v{P2+1}, vcc
v_cndmask_b32 v48, v{vq}, v{q3}, vcc
v_cndmask_b32 v49, v{vq+1}, v{q3+1}, vcc
v_cndmask_b32 v50, v{vE}, v{P3}, vcc
v_cndmask_b32 v51, v{vE+1}, v{P3+1}, vcc
v_cmp_lt_u32 vcc, 31, v{vLANE}
s_nop 1
v_cndmask_b32 v{vM}, v44, v48, vcc
v_cndmask_b32 v{vM+1}, v45, v49, vcc
v_cndmask_b32 v{vPd}, v46, v50, vcc
v_cndmask_b32 v{vPd+1}, v47, v51, vcc""")
vI = 52
e(f"""v_bfe_u32 v44, v{vLANE}, 4, 1
v_lshrrev_b32 v45, 5, v{vLANE}
v_and_b32 v46, 1, v{vLANE}
v_lshlrev_b32 v46, 4, v46
v_mov_b32 v47, 0x3f80
v_lshlrev_b32 v46, v46, v47
v_cmp_eq_u32 vcc, v44, v45
v_bfe_u32 v47, v{vLANE}, 1, 3
s_nop 0
v_cndmask_b32 v46, 0, v46, vcc""")
for k_ in range(8):
    e(f"v_cmp_eq_u32 vcc, {k_}, v47\ns_nop 1\nv_cndmask_b32 v{vI+k_}, 0, v46, vcc")
vG = 224
for i in range(7):
    e(f"v_mov_b32 v{vG+4*i}, 0\nv_mov_b32 v{vG+4*i+1}, 1\nv_mov_b32 v{vG+4*i+2}, 0\nv_mov_b32 v{vG+4*i+3}, 1")
Lp, Lc, Ld = e.label("agg"), e.label("aggc"), e.label("aggd")
e(f"s_mov_b32 s{sCNT}, {SPIN}\n{Lp}:")
for i in range(7):
    e(f"""s_cmp_le_u32 s{sRB}, {i}
s_cbranch_scc1 {Lc}
s_sub_u32 s{sT0}, s{sT4}, {8192*(i+1)}
buffer_load_dwordx4 {vr(vG+4*i,4)}, v26, s[{S_WS}:{S_WS+3}], s{sT0} offen sc1""")
e(f"{Lc}:\ns_waitcnt vmcnt(0)")
e.vmq = []
e(f"v_and_b32 v44, v{vG+1}, v{vG+3}")
for i in range(1, 7):
    e(f"v_and_b32 v45, v{vG+4*i+1}, v{vG+4*i+3}\nv_and_b32 v44, v44, v45")
e(f"""v_cmp_ne_u32 vcc, 0, v44
s_nop 1
s_cmp_eq_u64 vcc, -1
s_cbranch_scc1 {Ld}
s_sub_u32 s{sCNT}, s{sCNT}, 1
s_cbranch_scc1 {Ld}
s_branch {Lp}
{Ld}:""")
for i in range(7):
    e(f"v_mov_b32 v{vG+4*i+1}, v{vG+4*i+2}")
cfma(4, vG + 24, vQ, vG + 20, 2)
for i in range(4, -1, -1):
    cfma(4, 4, vQ, vG + 4 * i, 2)
cfma(4, 4, vM, vPd, 2)
stamp(5)
e(f"""s_lshl_b32 s{sT0}, s{sCT}, 1
s_add_u32 s{sT0}, s{sT0}, s{sNG}
s_lshl_b32 s{sT0}, s{sT0}, 13
s_lshl_b32 s{sT1}, s{sRB}, 1
s_add_u32 s{sT1}, s{sT1}, s{sTG}
s_lshl_b32 s{sT1}, s{sT1}, 18
s_add_u32 s{sT0}, s{sT0}, s{sT1}
s_add_u32 s{sAOFF}, s{sT0}, {WS_H}
v_lshlrev_b32 v26, 4, v{vLANE}""")
vP = 60
vD2 = 224
vO2 = 28
def d2_out(b):
    out = []
    for ci in range(2):
        for fr in range(2):
            for i in range(4):
                r = vD2 + 16 * ci + 8 * fr + 2 * i
                out.append((f"v_cvt_pk_bf16_f32 v{vO2+8*ci+4*fr+i}, v{r}, v{r+1}", None))
            out.append((f"s_add_u32 s{sT0}, s{sAOFF}, {(b>>1)*64*2048 + ci*4096}", None))
            out.append((f"buffer_store_dwordx4 {vr(vO2+8*ci+4*fr,4)}, v26, s[{S_WS}:{S_WS+3}], s{sT0} offen offset:{1024*(b&1)+2048*fr} sc1", "h"))
    return out
for b in range(4):
    for r in range(16):
        U = Ub(b) + 2 * r
        prev = 4 if (b == 0 and r == 0) else (Ub(b) + 2 * r - 2 if r else Ub(b - 1) + 30)
        cfma(U, prev, vA, U, 2)
    if b > 0:
        for s_, tag in d2_out(b - 1):
            e.vm(s_, tag) if tag else e(s_)
    for i in range(8):
        U = Ub(b) + 4 * i
        e(f"v_cvt_pk_bf16_f32 v{vP+i}, v{U}, v{U+2}")
    for i in range(8):
        U = Ub(b) + 4 * i
        e(f"v_cvt_pk_bf16_f32 v{vP+8+i}, -v{U+1}, -v{U+3}")
    e("s_nop 1")
    for ci in range(2):
        D = vr(vD2 + 16 * ci, 16)
        e(f"v_mfma_f32_32x32x16_bf16 {D}, {vr(vP+8*ci,4)}, {vr(vI,4)}, 0")
        e(f"v_mfma_f32_32x32x16_bf16 {D}, {vr(vP+8*ci+4,4)}, {vr(vI+4,4)}, {D}")
e("s_nop 11")
for s_, tag in d2_out(3):
    e.vm(s_, tag) if tag else e(s_)
e.vm_wait_all()
flag_store(f"s_lshl_b32 s{sT0}, s{sCT}, 1\ns_add_u32 s{sT0}, s{sT0}, s{sNG}\ns_add_u32 s{sT0}, s{sT0}, 48")
stamp(6)
e("s_branch L_phase2")

e.vmq = list(vm_entry)
e("L_stats:")
e(f"""s_sub_u32 s{sCT}, s{sCT}, 22
s_lshl_b32 s{sT0}, s{sRB}, 1
s_add_u32 s{sT4}, s{sT0}, s{sCT}
s_lshl_b32 s{sT0}, s{sT4}, 7
s_lshl_b32 s{sT1}, s{sWAVE}, 5
s_add_u32 s{sT5}, s{sT0}, s{sT1}
v_add_u32 v2, s{sT5}, v8
v_lshlrev_b32 v2, 10, v2
v_and_b32 v3, 15, v{vLANE}
v_lshl_add_u32 v2, v3, 4, v2""")
for u in range(8):
    e(f"s_mov_b32 s{sT0}, {4096*u}")
    for i in range(4):
        e.vm(f"buffer_load_dwordx4 {vr(128+16*u+4*i,4)}, v2, s[{S_X}:{S_X+3}], s{sT0} offen offset:{256*i}", f"x{u}")
e(f"""v_mov_b32 v4, 0
v_mov_b32 v5, 0
v_mov_b32 v6, 0
v_mov_b32 v7, 0
s_lshl_b32 s{sT0}, s{sT4}, 12
s_add_u32 s{sT0}, s{sT0}, {WS_AGG}
v_lshlrev_b32 v9, 4, v0""")
e.vm(f"buffer_store_dwordx4 v[4:7], v9, s[{S_WS}:{S_WS+3}], s{sT0} offen sc1", "z")
e(f"""s_lshl_b32 s{sT0}, s{sT4}, 13
s_lshl_b32 s{sT1}, s{sWAVE}, 11
s_add_u32 s{sT0}, s{sT0}, s{sT1}
s_add_u32 s{sT0}, s{sT0}, {WS_FLAG}
v_lshlrev_b32 v9, 7, v3""")
e.vm(f"buffer_store_dword v4, v9, s[{S_WS}:{S_WS+3}], s{sT0} offen sc1", "z")
e("v_mov_b32 v10, 0x3f803f80")
vSU, vSQ = 64, 72
for u in range(8):
    e.vm_wait(f"x{u}")
    d = 128 + 16 * u
    e(f"v_dot2_f32_bf16 v{vSU+u}, v{d}, v10, 0\nv_dot2_f32_bf16 v{vSQ+u}, v{d}, v{d}, 0")
    e("s_nop 1")
    for i in range(1, 16):
        e(f"v_dot2_f32_bf16 v{vSU+u}, v{d+i}, v10, v{vSU+u}\nv_dot2_f32_bf16 v{vSQ+u}, v{d+i}, v{d+i}, v{vSQ+u}")
e("s_nop 2")
for sh in (8, 4, 2, 1):
    for r in range(vSU, vSU + 16):
        e(f"v_add_f32_dpp v{r}, v{r}, v{r} row_ror:{sh} row_mask:0xf bank_mask:0xf")
for u in range(1, 8):
    e(f"v_cmp_eq_u32 vcc, {u}, v3\ns_nop 1\nv_cndmask_b32 v{vSU}, v{vSU}, v{vSU+u}, vcc\nv_cndmask_b32 v{vSQ}, v{vSQ}, v{vSQ+u}, vcc")
e(f"""v_mul_f32 v7, {fbits(1/512)}, v{vSU}
v_mul_f32 v6, {fbits(1/512)}, v{vSQ}
v_fma_f32 v6, -v7, v7, v6
v_max_f32 v6, 0, v6
v_add_f32 v6, {fbits(1e-5)}, v6
v_rsq_f32 v5, v6
v_cvt_pk_bf16_f32 v4, -v7, -v7
v_and_b32 v9, s{sMASK}, v4
v_sub_f32 v9, -v7, v9
v_cvt_pk_bf16_f32 v9, v9, v9
v_lshrrev_b32 v4, 16, v4
v_and_or_b32 v4, v9, s{sMASK}, v4
v_lshl_add_u32 v9, v3, 2, v8
v_add_u32 v9, s{sT5}, v9
v_lshlrev_b32 v11, 4, v9
v_lshlrev_b32 v12, 2, v9
v_cmp_gt_u32 vcc, 8, v3
s_mov_b32 s{sT0}, {WS_STAT}
s_mov_b32 s{sT1}, {WS_R}
s_mov_b64 exec, vcc""")
e.vm(f"buffer_store_dwordx4 v[4:7], v11, s[{S_WS}:{S_WS+3}], s{sT0} offen sc1", "z")
e.vm(f"buffer_store_dword v5, v12, s[{S_WS}:{S_WS+3}], s{sT1} offen sc1", "z")
e("s_mov_b64 exec, -1")
e.vm_wait_all()
e("s_barrier")
srd(S_M, P_DBG, 256)
Lns = e.label("nosig")
e(f"""s_cmp_eq_u32 s{sWAVE}, 0
s_cbranch_scc0 {Lns}
s_lshl_b32 s{sT0}, s{sT4}, 2
v_mov_b32 v2, 0
v_mov_b32 v3, 1
s_mov_b64 exec, 1
buffer_store_dword v3, v2, s[{S_M}:{S_M+3}], s{sT0} offen sc1
s_mov_b64 exec, -1
{Lns}:""")
stamp(1)
e(f"v_min_u32 v2, 15, v{vLANE}\nv_lshlrev_b32 v2, 2, v2")
spin_poll(3, 2, S_M, "0")
stamp(2)

e("; ---------------- phase 2")
e("L_phase2:")
e.vmq = ["flag"]
vCA, vCA2, vDA, vDA2 = 24, 28, 32, 34
vA0, vA1, vOA = 36, 37, 38
vWB = [40, 48]
vXQ, vDQ, vRC = 56, 64, 72
vAB = 80
e("s_barrier")
calc_b_read_addrs(vCA, vCA2, vDA, vDA2, 2)
for u in range(8):
    emit_list(dma_cunit(u))
emit_list(dma_dunit(0))
e.vm_wait_all()
for u in range(8):
    for s_ in read_cunit(u, vCA, vCA2): e(s_)
for s_ in read_dunit_agpr(0, vDA, vDA2): e(s_)
e("s_waitcnt lgkmcnt(0)")
for u in range(1, 10):
    emit_list(dma_dunit(u))
e.vm_wait_all()
for u in range(1, 4):
    for s_ in read_dunit_agpr(u, vDA, vDA2): e(s_)
e("s_waitcnt lgkmcnt(0)")
emit_list(dma_dunit(10))
e("s_barrier")
stamp(7)
e(f"""s_lshl_b32 s{sT0}, s{sXB}, 8
s_lshr_b32 s{sT1}, s{sQ}, 1
s_lshl_b32 s{sT1}, s{sT1}, 7
s_add_u32 s{sT0}, s{sT0}, s{sT1}
s_and_b32 s{sT1}, s{sQ}, 1
s_lshl_b32 s{sT1}, s{sT1}, 5
s_add_u32 s{sT0}, s{sT0}, s{sT1}
s_lshl_b32 s{sT1}, s{sNG}, 4
s_add_u32 s{sT0}, s{sT0}, s{sT1}
v_bfe_u32 v2, v{vLANE}, 4, 1
v_and_b32 v3, 15, v{vLANE}
v_lshl_add_u32 v2, v2, 6, v3
v_add_u32 v2, s{sT0}, v2
s_lshl_b32 s{sT0}, s{sC0}, 6
s_lshl_b32 s{sT1}, s{sTG}, 5
s_add_u32 s{sT0}, s{sT0}, s{sT1}
v_lshrrev_b32 v3, 5, v{vLANE}
v_lshl_add_u32 v3, v3, 2, s{sT0}
v_lshlrev_b32 v3, 1, v3
v_lshl_add_u32 v4, v2, 10, v3
v_lshlrev_b32 v{vOA}, 1, v4
v_lshlrev_b32 v2, 4, v2
s_mov_b32 s{sT0}, {WS_STAT}""")
srd(S_M, P_D, 1024)
for g in range(4):
    e.vm(f"buffer_load_dwordx2 {vr(vXQ+2*g,2)}, v4, s[{S_X}:{S_X+3}], 0 offen offset:{16*g}", "fin")
    e.vm(f"buffer_load_dwordx2 {vr(vDQ+2*g,2)}, v3, s[{S_M}:{S_M+3}], 0 offen offset:{16*g}", "fin")
e.vm(f"buffer_load_dwordx4 {vr(vRC,4)}, v2, s[{S_WS}:{S_WS+3}], s{sT0} offen sc1", "fin")
e(f"""s_lshl_b32 s{sT0}, s{sNG}, 10
v_lshl_add_u32 v{vA0}, v{vLANE}, 4, s{sT0}
v_xor_b32 v{vA1}, 1024, v{vA0}
s_lshl_b32 s{sT0}, s{sXB}, 2
s_add_u32 s{sT0}, s{sT0}, s{sQ}
s_mul_i32 s{sAOFF}, s{sT0}, {86*2048}
s_mul_i32 s{sT1}, s{sWAVE}, {22*2048}
s_add_u32 s{sAOFF}, s{sAOFF}, s{sT1}
s_lshl_b32 s{sT4}, s{sT0}, 17
s_lshl_b32 s{sT1}, s{sWAVE}, 15
s_add_u32 s{sT4}, s{sT4}, s{sT1}
s_add_u32 s{sT4}, s{sT4}, {WS_H}
s_lshr_b32 s{sT0}, s{sT0}, 1
s_lshl_b32 s{sT0}, s{sT0}, 13
s_add_u32 s{sT5}, s{sT0}, {WS_FLAG}
s_mul_i32 s{sT1}, s{sWAVE}, 11
v_min_u32 v2, 10, v{vLANE}
v_add_u32 v2, s{sT1}, v2
v_min_u32 v2, 42, v2
v_lshlrev_b32 v2, 7, v2
s_lshl_b32 s{sT1}, s{sWAVE}, 2
s_add_u32 s{sT1}, s{sT1}, 48
v_min_u32 v4, 3, v{vLANE}
v_add_u32 v4, s{sT1}, v4
v_lshlrev_b32 v4, 7, v4""")
spin_poll(3, 2, S_WS, f"s{sT5}")
stamp(8)
def a_loads(ks, soff, tag):
    B = vAB + 8 * ks
    o = 2048 * (ks & 1)
    L = [(f"buffer_load_dwordx4 {vr(B,4)}, v{vA0}, s[{S_WS}:{S_WS+3}], s{soff} offen offset:{o} sc1", tag),
         (f"buffer_load_dwordx4 {vr(B+4,4)}, v{vA1}, s[{S_WS}:{S_WS+3}], s{soff} offen offset:{o} sc1", tag)]
    if ks & 1:
        L.append((f"s_add_u32 s{soff}, s{soff}, 4096", None))
    return L
for ks in range(22):
    if ks == 20:
        e(f"""s_cmp_eq_u32 s{sWAVE}, 3
s_cselect_b32 s{sT0}, 0x7f000000, 0
v_add_u32 v5, s{sT0}, v{vA0}
v_add_u32 v6, s{sT0}, v{vA1}""")
    if ks >= 20:
        for s_, tag in a_loads(ks, sAOFF, f"a{ks}"):
            s_ = s_.replace(f"v{vA0},", "v5,").replace(f"v{vA1},", "v6,")
            e.vm(s_, tag) if tag else e(s_)
    else:
        emit_list(a_loads(ks, sAOFF, f"a{ks}"))
e.vm(f"buffer_load_dword v3, v4, s[{S_WS}:{S_WS+3}], s{sT5} offen sc1", "yflag")
def p2_mfmas(D0, wreg, ks, first):
    out = []
    for i in range(4):
        D = ar(D0 + 16 * i, 16)
        out.append(f"v_mfma_f32_32x32x16_bf16 {D}, {wreg(i & 1)}, {vr(vAB + 8*ks + 4*(i>>1), 4)}, {'0' if first else D}")
    return out
def wd_reads(ks):
    out = []
    for dblk in range(2):
        r0 = vWB[ks & 1] + 4 * dblk
        out += dfrag_reads(ks >> 1, ks & 1, dblk, lambda o, r0=r0: vr(r0 + o, 2), vDA, vDA2)
    return [(s_, None) for s_ in out]
for ks in range(22):
    e.vm_wait(f"a{ks}")
    if ks >= 8:
        e("s_waitcnt lgkmcnt(0)")
    fill = wd_reads(ks + 1) if 8 <= ks + 1 < 22 else []
    wreg = (lambda d, ks=ks: ar(A_Y + 8 * ks + 4 * d, 4)) if ks < 8 else (lambda d, ks=ks: vr(vWB[ks & 1] + 4 * d, 4))
    interleave(p2_mfmas(A_DN, wreg, ks, ks == 0), fill)
stamp(9)
e.vm_wait("yflag")
spin_poll(3, 4, S_WS, f"s{sT5}", first_loaded=True)
stamp(10)
for ks in range(16):
    emit_list(a_loads(ks, sT4, f"y{ks}"))
vRW = 2
e(f"v_lshlrev_b32 v7, 4, v{vLANE}")
for i in range(1, 4):
    e(f"s_xor_b32 s{sT0}, s{sWAVE}, {i}")
    if i < 3:
        e(f"s_mul_i32 s{sT0}, s{sT0}, 12288\ns_add_u32 s{sT0}, s{sT0}, {2*SLOT + 4096*i}")
    else:
        e(f"s_lshl_b32 s{sT0}, s{sT0}, 12\ns_add_u32 s{sT0}, s{sT0}, {L_MISC}")
    e(f"v_add_u32 v{vRW+i-1}, s{sT0}, v7")
e(f"""s_lshl_b32 s{sT0}, s{sWAVE}, 12
s_add_u32 s{sT0}, s{sT0}, {L_MISC}
v_add_u32 v5, s{sPB0}, v7
v_add_u32 v6, s{sT0}, v7""")
for i in range(1, 4):
    for qd in range(4):
        e(f"ds_write_b128 v{vRW+i-1}, {ar(A_DN+16*i+4*qd,4)} offset:{1024*qd}")
vZ, vXFf, vGt = 208, 224, 240
for r in range(16):
    e(f"v_accvgpr_read_b32 v{vGt+r}, a{A_DN+r}")
e("s_waitcnt lgkmcnt(0)\ns_barrier")
tmp = [40, 208, 224]
for i in range(3):
    for qd in range(4):
        if i < 2:
            e(f"ds_read_b128 {vr(tmp[i]+4*qd,4)}, v5 offset:{4096*(i+1) + 1024*qd}")
        else:
            e(f"ds_read_b128 {vr(tmp[i]+4*qd,4)}, v6 offset:{1024*qd}")
for i in range(3):
    e(f"s_waitcnt lgkmcnt({8-4*i})")
    for r in range(0, 16, 2):
        e(f"v_pk_add_f32 {vr(vGt+r,2)}, {vr(vGt+r,2)}, {vr(tmp[i]+r,2)}")
e(f"s_mov_b32 s{sT0}, {fbits(-LOG2E)}")
for r in range(16):
    e(f"v_mul_f32 v{40+r}, s{sT0}, v{vGt+r}")
for r in range(16):
    e(f"v_exp_f32 v{40+r}, v{40+r}")
for r in range(16):
    e(f"v_add_f32 v{40+r}, 1.0, v{40+r}")
for r in range(16):
    e(f"v_rcp_f32 v{40+r}, v{40+r}")
for r in range(0, 16, 2):
    e(f"v_pk_mul_f32 {vr(vGt+r,2)}, {vr(vGt+r,2)}, {vr(40+r,2)}")
for k_ in range(8):
    e(f"""v_lshlrev_b32 v{vXFf+2*k_}, 16, v{vXQ+k_}
v_and_b32 v{vXFf+2*k_+1}, s{sMASK}, v{vXQ+k_}
v_lshlrev_b32 v{40+2*k_}, 16, v{vDQ+k_}
v_and_b32 v{40+2*k_+1}, s{sMASK}, v{vDQ+k_}""")
for r in range(0, 16, 2):
    e(f"v_pk_add_f32 {vr(vZ+r,2)}, {vr(vXFf+r,2)}, {vr(vRC+2,2)} op_sel:[0,1] op_sel_hi:[1,1] neg_lo:[0,1] neg_hi:[0,1]")
    e(f"v_pk_mul_f32 {vr(40+r,2)}, {vr(40+r,2)}, {vr(vRC,2)} op_sel:[0,1] op_sel_hi:[1,1]")
    e(f"v_pk_mul_f32 {vr(vZ+r,2)}, {vr(vZ+r,2)}, {vr(40+r,2)}")
for i in range(1, 4):
    e(f"s_xor_b32 s{sT0}, s{sWAVE}, {i}\ns_mul_i32 s{sT0}, s{sT0}, 12288\ns_add_u32 s{sT0}, s{sT0}, {4096*(i-1)}\nv_add_u32 v{vRW+i-1}, s{sT0}, v7")
e(f"v_add_u32 v5, s{sPB1}, v7")
srd(S_M, P_OUT, 4194304)
stamp(11)
for ks in range(16):
    e.vm_wait(f"y{ks}")
    interleave(p2_mfmas(A_Y, lambda d, ks=ks: ar(A_C + 8 * ks + 4 * d, 4), ks, ks == 0), [])
stamp(12)
e("s_nop 11")
for i in range(1, 4):
    for qd in range(4):
        e(f"ds_write_b128 v{vRW+i-1}, {ar(A_Y+16*i+4*qd,4)} offset:{1024*qd}")
for r in range(16):
    e(f"v_accvgpr_read_b32 v{40+r}, a{A_Y+r}")
for r in range(0, 16, 2):
    e(f"v_pk_add_f32 {vr(vZ+r,2)}, {vr(vZ+r,2)}, {vr(40+r,2)}")
e("s_waitcnt lgkmcnt(0)\ns_barrier")
for i in range(3):
    for qd in range(4):
        e(f"ds_read_b128 {vr(80+16*i+4*qd,4)}, v5 offset:{4096*i + 1024*qd}")
for i in range(3):
    e(f"s_waitcnt lgkmcnt({8-4*i})")
    for r in range(0, 16, 2):
        e(f"v_pk_add_f32 {vr(vZ+r,2)}, {vr(vZ+r,2)}, {vr(80+16*i+r,2)}")
for g in range(4):
    for r in (4 * g, 4 * g + 2):
        e(f"v_pk_fma_f32 {vr(vZ+r,2)}, {vr(vZ+r,2)}, {vr(vGt+r,2)}, {vr(vXFf+r,2)}")
    e.vm(f"buffer_store_dwordx4 {vr(vZ+4*g,4)}, v{vOA}, s[{S_M}:{S_M+3}], 0 offen offset:{32*g}", "out")
if OPT["stamp"]:
    e.vm_wait_all()
    stamp(13)
    stamp_flush()
e("L_end:\ns_endpgm")
e(f""".section .rodata,"a"
.p2align 6
.amdhsa_kernel {KN}
  .amdhsa_next_free_vgpr 512
  .amdhsa_next_free_sgpr 96
  .amdhsa_accum_offset 256
  .amdhsa_group_segment_fixed_size 0
  .amdhsa_kernarg_size 128
  .amdhsa_user_sgpr_count 2
  .amdhsa_user_sgpr_kernarg_segment_ptr 1
  .amdhsa_system_sgpr_workgroup_id_x 1
  .amdhsa_float_denorm_mode_32 3
.end_amdhsa_kernel""")
txt = e.text()
probs = check_hazards(txt)
for p in probs:
    sys.stderr.write(p + "\n")
sys.stderr.write(f"{len(probs)} hazard findings, {len(txt)} bytes\n")
open(sys.argv[1], "w").write(txt)
```

```python
import sys, math
from asmlib import *

NAME = "recurrent_scan__ssm_conv_s5__glu_gated_geglu__prompt"
KN = NAME + "_kernel"
OPT = dict(stamp=False)
for a_ in sys.argv[2:]:
    k_, _, v_ = a_.partition("=")
    OPT[k_] = (int(v_) if v_ else True)

WS_HH = 0
WS_H = 0x600000
WS_STAT = 0xA00000
WS_R = 0xA10000
WS_AGG = 0xA20000
WS_FLAG = 0xA40000
WS_STAMP = 0xA80000
WS_SIZE = 0xB00000
SLOT = 49152
L_MISC = 3 * SLOT
L_XS = L_MISC
L_XE = L_MISC + 1024
L_XR = L_MISC + 3072
LDS_BYTES = 163840
SPIN = 200000

S_X, S_W, S_WS, S_CRE, S_CIM, S_WD, S_M = 4, 8, 12, 16, 20, 24, 28
P_X, P_LRE, P_LIM, P_BRE, P_BIM, P_CRE, P_CIM, P_LDT = 32, 34, 36, 38, 40, 42, 44, 46
P_D, P_BX, P_WG, P_WU, P_WD, P_OUT, P_DBG, P_WSP = 48, 50, 52, 54, 56, 58, 60, 62
sWAVE, sRB, sCT, sXB, sQ, sC0, sTG, sNG = 64, 65, 66, 67, 68, 69, 70, 71
sXOFF, sWOFF, sWSTEP, sMX, sMW, sPB0, sPB1 = 72, 73, 74, 75, 76, 77, 78
sT0, sT1, sT2, sT3, sCNT, sMASK = 79, 80, 81, 82, 83, 84
sCOFF, sDOFF, sAOFF = 85, 87, 88
sST = 90
sT4, sT5, sU0 = 92, 93, 89
sPC = 94
sYX, sDM, sDU, sDA = 96, 97, 98, 99

vLANE = 1
vCV, vDV = 16, 20
vXV, vWV = 24, 32
vXA0, vXA2, vWA0, vWA2 = 36, 40, 44, 48
vS0, vS1, vST0, vST1 = 52, 53, 54, 55
vREC = 56
vSF = 72
vXF = [80, 104]
vWF = [96, 120, 72]
vACC = 128
def acc(b, c): return vACC + 16 * (2 * b + c)

e = Emit()
OUTF = {0: '', 1: ' sc1', 2: ' nt', 3: ' sc0 sc1'}[OPT.get('outf', 0)]

def srd(d, base, nbytes):
    e(f"""s_mov_b32 s{d}, s{base}
s_mov_b32 s{d+1}, s{base+1}
s_mov_b32 s{d+2}, {nbytes}
s_mov_b32 s{d+3}, 0x00020000""")

def stamp(i):
    if "leak" in OPT:
        if i == 0: e("s_memrealtime s[100:101]\ns_waitcnt lgkmcnt(0)\ns_mov_b32 s3, s100")
        if i == OPT["leak"]: e(f"s_memrealtime s[{sST}:{sST+1}]\ns_waitcnt lgkmcnt(0)\ns_mov_b32 s3, s{sST}")
    if OPT["stamp"]:
        e(f"s_memrealtime s[{sST}:{sST+1}]\ns_waitcnt lgkmcnt(0)\nv_writelane_b32 v15, s{sST}, {i}")
        if OPT.get("clk"):
            e(f"s_memtime s[{sST}:{sST+1}]\ns_waitcnt lgkmcnt(0)\nv_writelane_b32 v15, s{sST}, {i+32}")

def stamp_flush():
    if OPT["stamp"]:
        e(f"""s_lshl_b32 s{sT0}, s2, 2
s_add_u32 s{sT0}, s{sT0}, s{sWAVE}
s_lshl_b32 s{sT0}, s{sT0}, 8
s_add_u32 s{sT0}, s{sT0}, {WS_STAMP}
v_lshlrev_b32 v14, 2, v{vLANE}
buffer_store_dword v15, v14, s[{S_WS}:{S_WS+3}], s{sT0} offen""")

def spin_poll(vdst, vaddr, srd_, soff, first_loaded=False, n=1, tagregs=None, extra_loads=None):
    L = e.label("poll"); D = e.label("pdone"); C = e.label("pchk")
    e(f"s_mov_b32 s{sCNT}, {SPIN}")
    if first_loaded:
        e(f"s_branch {C}")
    e(f"{L}:")
    e(f"buffer_load_dword v{vdst}, v{vaddr}, s[{srd_}:{srd_+3}], {soff} offen sc1")
    e("s_waitcnt vmcnt(0)")
    e(f"{C}:")
    e(f"""v_cmp_ne_u32 vcc, 0, v{vdst}
s_nop 1
s_cmp_eq_u64 vcc, -1
s_cbranch_scc1 {D}
s_sub_u32 s{sCNT}, s{sCNT}, 1
s_cbranch_scc1 {D}
s_sleep 1
s_branch {L}
{D}:""")
    if not first_loaded:
        e.vmq = []

hdr = open("cdna_kernels/" + NAME + ".s.ref").read().split("; Override launch")[0]
e.lines.append(hdr.rstrip("\n"))
e(f"; @launch grid=(256,1,1) block=(256,1,1) lds={LDS_BYTES}")
e(f""".amdgcn_target "amdgcn-amd-amdhsa--gfx950"
.text
.globl {KN}
.p2align 8
.type {KN},@function
{KN}:""")
e(f"""s_cmp_ge_u32 s2, 256
s_cbranch_scc1 L_end
s_load_dwordx16 s[32:47], s[0:1], 0
s_load_dwordx16 s[48:63], s[0:1], 64
s_getpc_b64 s[{sPC}:{sPC+1}]
Lpc0:""")
e(f"""v_lshrrev_b32 v2, 6, v0
v_and_b32 v{vLANE}, 63, v0
s_mov_b32 s{sMASK}, 0xffff0000
v_readfirstlane_b32 s{sWAVE}, v2""")
if OPT["stamp"]:
    e("v_mov_b32 v15, 0")
stamp(0)
e(f"""s_and_b32 s{sXB}, s2, 7
s_lshr_b32 s{sT0}, s2, 3
s_lshr_b32 s{sQ}, s{sT0}, 3
s_and_b32 s{sC0}, s{sT0}, 7
s_and_b32 s{sRB}, s2, 1
s_lshl_b32 s{sRB}, s{sRB}, 2
s_and_b32 s{sT1}, s{sT0}, 3
s_add_u32 s{sRB}, s{sRB}, s{sT1}
s_lshr_b32 s{sT0}, s{sT0}, 2
s_lshr_b32 s{sT1}, s{sXB}, 1
s_and_b32 s{sTG}, s{sWAVE}, 1
s_lshr_b32 s{sNG}, s{sWAVE}, 1
s_mul_i32 s{sPB1}, s{sWAVE}, 12288
s_add_u32 s{sPB0}, s{sPB1}, {2*SLOT}
s_lshl_b32 s{sMX}, s{sWAVE}, 13
; P2MAP
s_lshl_b32 s{sMW}, s{sWAVE}, 12
s_add_u32 s{sMW}, s{sMW}, 32768""")
if OPT.get("p2map", 1) == 1:
    i_ = e.lines.index("; P2MAP")
    e.lines[i_:i_+1] = ["    " + x for x in f"""s_lshr_b32 s{sT2}, s2, 3
s_bfe_u32 s{sQ}, s{sT2}, 0x20002
s_and_b32 s{sC0}, s{sT2}, 3
s_and_b32 s{sT3}, s2, 1
s_lshl_b32 s{sT3}, s{sT3}, 2
s_add_u32 s{sC0}, s{sC0}, s{sT3}
s_and_b32 s{sXB}, s{sXB}, 6
s_lshr_b32 s{sT2}, s{sT2}, 4
s_add_u32 s{sXB}, s{sXB}, s{sT2}""".split("\n")]
e(f"""v_lshrrev_b32 v6, 3, v{vLANE}
v_and_b32 v7, 7, v{vLANE}
v_lshrrev_b32 v8, 4, v{vLANE}
v_xor_b32 v9, v7, v8
v_lshlrev_b32 v9, 4, v9
v_xor_b32 v10, 64, v9""")
e(f"""s_lshl_b32 s{sT2}, s{sRB}, 8
s_lshl_b32 s{sT3}, s{sWAVE}, 6
s_add_u32 s{sT2}, s{sT2}, s{sT3}
v_add_u32 v11, s{sT2}, v6
v_lshlrev_b32 v11, 10, v11
v_add_u32 v12, v11, v9
v_add_u32 v13, v11, v10""")
for i in range(8):
    e(f"v_add_u32 v{vXV+i}, {8192*i - 1024*(i&3)}, v{12 + (i&1)}")
e(f"""s_lshl_b32 s{sT2}, s{sC0}, 6
v_add_u32 v11, s{sT2}, v6
v_lshlrev_b32 v11, 10, v11
v_add_u32 v12, v11, v9
v_add_u32 v13, v11, v10""")
for i in range(4):
    e(f"v_add_u32 v{vCV+i}, {7168*i}, v{12 + (i&1)}")
e(f"""v_and_b32 v11, 1, v8
v_lshlrev_b32 v11, 2, v11
v_xor_b32 v11, v11, v7
v_lshlrev_b32 v14, 4, v11
s_lshl_b32 s{sT2}, s{sC0}, 7
v_lshl_add_u32 v11, v6, 10, v14
v_add_u32 v11, s{sT2}, v11""")
for i in range(4):
    e(f"v_add_u32 v{vDV+i}, {7168*i}, v11")
e("s_waitcnt lgkmcnt(0)")
srd(S_X, P_X, 2097152)
srd(S_WS, P_WSP, WS_SIZE)
srd(S_CRE, P_CRE, 524288)
srd(S_CIM, P_CIM, 524288)
srd(S_WD, P_WD, 1376 * 1024)
ROT = OPT.get("rot", 1)
if ROT == 0:
    e(f"s_mov_b32 s{sXOFF}, 0")
elif ROT == 2:
    e(f"""s_and_b32 s{sXOFF}, s{sRB}, 3
s_lshl_b32 s{sXOFF}, s{sXOFF}, 1
s_add_u32 s{sXOFF}, s{sXOFF}, s{sT0}
s_and_b32 s{sXOFF}, s{sXOFF}, 7
s_lshl_b32 s{sXOFF}, s{sXOFF}, 7""")
elif ROT == 1:
    e(f"""s_lshl_b32 s{sXOFF}, s{sRB}, 1
s_add_u32 s{sXOFF}, s{sXOFF}, s{sT0}
s_and_b32 s{sXOFF}, s{sXOFF}, 3
s_lshl_b32 s{sXOFF}, s{sXOFF}, 8""")
elif ROT == 3:
    e(f"""s_xor_b32 s{sXOFF}, s{sRB}, s{sT0}
s_and_b32 s{sXOFF}, s{sXOFF}, 1
s_lshl_b32 s{sXOFF}, s{sXOFF}, 9""")
if OPT.get("p2map", 1) == 1:
    e(f"""s_xor_b32 s{sT2}, s{sQ}, s{sC0}
s_and_b32 s{sT3}, s{sT2}, 2
s_lshl_b32 s{sYX}, s{sT3}, 2
s_and_b32 s{sT2}, s{sT2}, 1
s_lshl_b32 s{sT3}, s{sT2}, 1
s_or_b32 s{sYX}, s{sYX}, s{sT3}
s_and_b32 s{sT3}, s{sXB}, 1
s_lshl_b32 s{sT3}, s{sT3}, 2
s_add_u32 s{sT3}, s{sT3}, s{sQ}
s_and_b32 s{sDU}, s{sC0}, 3
s_mul_i32 s{sDU}, s{sDU}, 3
s_add_u32 s{sDU}, s{sDU}, s{sT3}
s_cmp_eq_u32 s{sWAVE}, 3
s_cselect_b32 s{sDM}, 10, 11
s_sub_u32 s{sT3}, s{sDU}, s{sDM}
s_cselect_b32 s{sDU}, s{sDU}, s{sT3}""")
else:
    e(f"""s_xor_b32 s{sT2}, s{sQ}, s{sC0}
s_and_b32 s{sT3}, s{sT2}, 2
s_lshl_b32 s{sYX}, s{sT3}, 2
s_and_b32 s{sT2}, s{sT2}, 1
s_lshl_b32 s{sT3}, s{sT2}, 1
s_or_b32 s{sYX}, s{sYX}, s{sT3}
s_and_b32 s{sT3}, s{sC0}, 4
s_or_b32 s{sYX}, s{sYX}, s{sT3}
s_cmp_eq_u32 s{sWAVE}, 3
s_cselect_b32 s{sDM}, 10, 11
s_mul_i32 s{sDU}, s{sQ}, 3
s_add_u32 s{sDU}, s{sDU}, s{sC0}
s_sub_u32 s{sT3}, s{sDU}, s{sDM}
s_cselect_b32 s{sDU}, s{sDU}, s{sT3}""")
if OPT.get("stag") == 2:
    e(f"""s_and_b32 s{sT3}, s{sQ}, 2
s_lshl_b32 s{sYX}, s{sT3}, 2
s_and_b32 s{sT2}, s{sQ}, 1
s_lshl_b32 s{sT3}, s{sT2}, 1
s_or_b32 s{sYX}, s{sYX}, s{sT3}
s_and_b32 s{sT3}, s{sXB}, 1
s_lshl_b32 s{sT3}, s{sT3}, 2
s_add_u32 s{sDU}, s{sT3}, s{sQ}""")
if not OPT.get("stag"):
    e(f"s_mov_b32 s{sYX}, 0\ns_mov_b32 s{sDU}, 0\ns_mov_b32 s{sT2}, 0")
e(f"""s_mov_b32 s{sDA}, s{sDU}
s_cmp_eq_u32 s{sT2}, 0
s_cselect_b32 s{S_CRE}, s{P_CRE}, s{P_CIM}
s_cselect_b32 s{S_CRE+1}, s{P_CRE+1}, s{P_CIM+1}
s_cselect_b32 s{S_CIM}, s{P_CIM}, s{P_CRE}
s_cselect_b32 s{S_CIM+1}, s{P_CIM+1}, s{P_CRE+1}
s_lshl_b32 s{sCOFF}, s{sWAVE}, 8
s_lshl_b32 s{sT2}, s{sTG}, 15
s_add_u32 s{sCOFF+1}, s{sCOFF}, 32768
s_sub_u32 s{sCOFF+1}, s{sCOFF+1}, s{sT2}
s_add_u32 s{sCOFF}, s{sCOFF}, s{sT2}
s_and_b32 s{sT2}, s{sYX}, 8
s_lshl_b32 s{sT2}, s{sT2}, 4
s_add_u32 s{sCOFF}, s{sCOFF}, s{sT2}
s_add_u32 s{sCOFF+1}, s{sCOFF+1}, s{sT2}
s_mul_i32 s{sDOFF}, s{sWAVE}, {352*1024}
s_cmp_lt_u32 s{sT0}, 2
s_cbranch_scc1 L_ssm
s_mul_i32 s{sT1}, s{sT1}, 6
s_add_u32 s{sCT}, s{sT1}, s{sT0}
s_sub_u32 s{sCT}, s{sCT}, 2
s_cmp_ge_u32 s{sCT}, 22
s_cbranch_scc1 L_stats""")

def code_touch():
    e(f"""s_lshr_b32 s{sT2}, s2, 3
s_and_b32 s{sT2}, s{sT2}, 7
s_lshl_b32 s{sT2}, s{sT2}, 2
s_add_u32 s{sT2}, s{sT2}, s{sWAVE}
s_mul_i32 s{sT2}, s{sT2}, ((L_end-Lpc0)/128+32)/32
v_min_u32 v0, ((L_end-Lpc0)/128+32)/32-1, v{vLANE}
v_add_u32 v0, s{sT2}, v0
v_lshlrev_b32 v0, 7, v0
v_min_u32 v0, L_end-Lpc0, v0
s_mov_b64 exec, 0xffff""")
    e.vm(f"global_load_dword v0, v0, s[{sPC}:{sPC+1}]", "code")
    e("s_mov_b64 exec, -1")

def dma_stage(stage):
    sb = (stage % 3) * SLOT
    out = []
    for i in range(8):
        if i % 4 == 0:
            out.append((f"s_add_u32 m0, s{sMX}, {sb + 4096*(i>>2)}", None))
            out.append(("s_nop 0", "pad"))
        out.append((f"buffer_load_dwordx4 v{vXV+i}, s[{S_X}:{S_X+3}], s{sXOFF} offen offset:{1024*(i&3)} lds", f"st{stage}"))
    out.append((f"s_add_u32 m0, s{sMW}, {sb}", None))
    out.append((f"s_mul_i32 s{sWOFF}, s{sXOFF}, s{sWSTEP}", None))
    for i in range(4):
        out.append((f"buffer_load_dwordx4 v{vWV+i}, s[{S_W}:{S_W+3}], s{sWOFF} offen offset:{1024*i} lds", f"st{stage}"))
        if i == 0: out.append((f"s_add_u32 s{sXOFF}, s{sXOFF}, 128", None))
        if i == 1: out.append((f"s_and_b32 s{sXOFF}, s{sXOFF}, 0x3ff", None))
    return out

def emit_list(lst):
    for s, tag in lst:
        if callable(s):
            s()
        elif tag and tag != "pad":
            e.vm(s, tag)
        else:
            e(s)

def pos_m0(pos):
    p, k = pos
    return (sPB0, 4096 * k) if p == 0 else (sPB1, 4096 * k + (SLOT if p == 2 else 0))
CPOS = {u: (u // 3, u % 3) for u in range(8)}
DPOS = {0: (2, 2), 1: (0, 0), 2: (0, 1), 3: (0, 2), 4: (1, 0), 5: (1, 1), 6: (1, 2), 7: (2, 0), 8: (2, 1), 9: (2, 2), 10: (0, 0)}
def dma_cunit(u):
    sub, dblk = u >> 1, u & 1
    ph, ci = sub >> 1, sub & 1
    sb, off = pos_m0(CPOS[u])
    s = S_CIM if ci else S_CRE
    out = [(f"s_add_u32 m0, s{sb}, {off}", None), (f"s_xor_b32 s{sU0}, s{sCOFF+dblk}, {128*ph}", None)]
    for i in range(4):
        out.append((f"buffer_load_dwordx4 v{vCV+i}, s[{s}:{s+3}], s{sU0} offen offset:{1024*i} lds", f"C{u}"))
    return out
def dma_dunit(u):
    sb, off = pos_m0(DPOS[u])
    out = [(f"s_add_u32 m0, s{sb}, {off}", None), (f"s_lshl_b32 s{sU0}, s{sDU}, 15", None), (f"s_add_u32 s{sU0}, s{sU0}, s{sDOFF}", None)]
    for i in range(4):
        out.append((f"buffer_load_dwordx4 v{vDV+i}, s[{S_WD}:{S_WD+3}], s{sU0} offen offset:{1024*i} lds", f"D{u}"))
        if i == 0: out.append((lambda: e(f"s_add_u32 s{sDU}, s{sDU}, 1\ns_cmp_eq_u32 s{sDU}, s{sDM}\ns_cselect_b32 s{sDU}, 0, s{sDU}"), None))
    return out
A_C = 0
A_DN = 128
A_Y = 192
vCA, vDA, vDA2 = 24, 28, 30
def read_cunit(u):
    sub, dblk = u >> 1, u & 1
    ph, ci = sub >> 1, sub & 1
    p, k = CPOS[u]
    off = 4096 * k + (SLOT if p == 2 else 0)
    out = []
    for jp in range(4):
        ksl = 4 * (2 * ph + (jp >> 1)) + 2 * ci + (jp & 1)
        out.append((f"ds_read_b128 {ar(A_C + 8*ksl + 4*dblk, 4)}, v{vCA+jp} offset:{off}", None))
    return out
def rebase_ca():
    return [(f"v_subrev_u32 v{vCA+j}, {2*SLOT}, v{vCA+j}", None) for j in range(4)]
def dfrag_reads(u, jj, dblk, dst):
    p, k = DPOS[u]
    base = vDA2 if p == 0 else vDA
    off = 4096 * k + (SLOT if p == 2 else 0) + 2048 * jj
    return [(f"ds_read_b64_tr_b16 {dst(2*ee)}, v{base+dblk} offset:{off + 1024*ee}", None) for ee in range(2)]
def read_dunit_agpr(u):
    out = []
    for jj in range(2):
        for dblk in range(2):
            r0 = A_Y + 8 * (2 * u + jj) + 4 * dblk
            out += dfrag_reads(u, jj, dblk, lambda o: ar(r0 + o, 2))
    return out
def calc_b_read_addrs(t):
    L = f"""v_and_b32 v{t}, 31, v{vLANE}
v_lshrrev_b32 v{t+1}, 5, v{vLANE}
v_bfe_u32 v{t+2}, v{vLANE}, 1, 3
v_xor_b32 v{t+2}, v{t+2}, v{t+1}
s_and_b32 s{sT3}, s{sYX}, 4
v_xor_b32 v{t+2}, s{sT3}, v{t+2}
v_lshlrev_b32 v{t}, 7, v{t}
v_add_u32 v{t}, s{sPB0}, v{t}
"""
    for j in range(4):
        L += f"""v_xor_b32 v{t+3}, {2*j}, v{t+2}
v_lshl_add_u32 v{vCA+j}, v{t+3}, 4, v{t}
"""
    L += f"""v_bfe_u32 v{t}, v{vLANE}, 2, 2
v_lshl_add_u32 v{t}, v{t+1}, 2, v{t}
v_lshlrev_b32 v{t}, 7, v{t}
v_add_u32 v{t}, s{sPB1}, v{t}
v_bfe_u32 v{t+2}, v{vLANE}, 4, 1
v_lshl_add_u32 v{t}, v{t+2}, 5, v{t}
v_and_b32 v{t+2}, 3, v{vLANE}
v_lshl_add_u32 v{t}, v{t+2}, 3, v{t}
v_bfe_u32 v{t+2}, v{vLANE}, 3, 1
v_xor_b32 v{t+2}, s{sTG}, v{t+2}
v_lshl_add_u32 v{vDA}, v{t+2}, 6, v{t}
v_xor_b32 v{vDA+1}, 64, v{vDA}
v_add_u32 v{vDA2}, {2*SLOT}, v{vDA}
v_add_u32 v{vDA2+1}, {2*SLOT}, v{vDA+1}"""
    return [(x, None) for x in L.split("\n")]
def waitv(tags):
    return (lambda: e.vm_wait(tags), None)
LGKM0 = ("s_waitcnt lgkmcnt(0)", None)
def flat(groups):
    return [it for g in groups for it in g]
def sprinkle(stream, side, start=0, end=None):
    end = len(stream) if end is None else end
    out = []; k = 0; n = len(side)
    for i, it in enumerate(stream):
        out.append(it)
        if start <= i < end:
            upto = math.ceil(n * (i - start + 1) / (end - start))
            while k < upto:
                out += side[k]; k += 1
    while k < n:
        out += side[k]; k += 1
    return out
def atoms(items, n=1):
    return [items[i:i+n] for i in range(0, len(items), n)]
def cgroups(us): return [g for u in us for g in dma_groups(dma_cunit(u))]
def dgroups(us): return [g for u in us for g in dma_groups(dma_dunit(u))]
def b_touch():
    def f0():
        e(f"""s_lshl_b32 s{sT2}, s2, 2
s_add_u32 s{sT2}, s{sT2}, s{sWAVE}
s_mul_i32 s{sT3}, s{sT2}, {11*128}
s_lshl_b32 s{sT2}, s{sT2}, 9
v_lshlrev_b32 v2, 7, v{vLANE}""")
    def f1():
        e("s_mov_b64 exec, 0x7ff")
        e.vm(f"buffer_load_dword v0, v2, s[{S_WD}:{S_WD+3}], s{sT3} offen", "bt")
        e("s_mov_b64 exec, 15")
        e.vm(f"buffer_load_dword v0, v2, s[{S_CRE}:{S_CRE+3}], s{sT2} offen", "bt")
        e.vm(f"buffer_load_dword v0, v2, s[{S_CIM}:{S_CIM+3}], s{sT2} offen", "bt")
        e("s_mov_b64 exec, -1")
    return [f0, f1]

def x_lds_addrs(tau0_code):
    e(tau0_code)
    e(f"""v_lshrrev_b32 v3, 5, v{vLANE}
v_bfe_u32 v4, v2, 1, 3
v_xor_b32 v4, v4, v3
s_lshl_b32 s{sT2}, s{sTG}, 14
v_lshlrev_b32 v2, 7, v2
v_add_u32 v2, s{sT2}, v2
s_lshl_b32 s{sT2}, s{sTG}, 1
v_xor_b32 v4, s{sT2}, v4""")
    for j in range(4):
        e(f"""v_xor_b32 v5, {2*j}, v4
v_lshl_add_u32 v{vXA0+j}, v5, 4, v2
v_add_u32 v{vXA2+j}, {2*SLOT}, v{vXA0+j}""")

def frag_reads(role, ks):
    stage, j = ks // 4, ks % 4
    slot = stage % 3
    so = 0 if slot == 2 else slot * SLOT
    xa = vXA2 if slot == 2 else vXA0
    wa = vWA2 if slot == 2 else vWA0
    W = vWF[ks % 3]; X = vXF[ks & 1]
    wr = []
    for c in range(2):
        if role == "ssm":
            wr.append([f"ds_read_b128 {vr(W+4*c, 4)}, v{wa+j} offset:{so + 8192*c}"])
        else:
            wr.append([f"ds_read_b64_tr_b16 {vr(W+4*c+2*ee, 2)}, v{wa+(j&1)} offset:{so + 8192*c + 2048*j + 512*ee}" for ee in range(2)])
    xr = [f"ds_read_b128 {vr(X+4*b, 4)}, v{xa+j} offset:{so + 2048*b}" for b in range(4)]
    return wr[0] + [xr[0]] + wr[1] + xr[1:]

def s_ops(ks, c):
    out = []
    for d in range(4):
        w = vWF[ks % 3] + 4 * c + d
        s = vS0 + c
        out += [f"v_lshlrev_b32 v{vST0}, 16, v{w}", f"v_and_b32 v{vST1}, s{sMASK}, v{w}",
                f"v_add_f32 v{s}, v{s}, v{vST0}", f"v_add_f32 v{s}, v{s}, v{vST1}"]
    return out

def mfmas(role, ks):
    out = []
    for b in range(4):
        for c in range(2):
            A = vr(vWF[ks % 3] + 4 * c, 4); B = vr(vXF[ks & 1] + 4 * b, 4)
            if role == "ssm":
                A, B = B, A
            D = vr(acc(b, c), 16)
            out.append(f"v_mfma_f32_32x32x16_bf16 {D}, {A}, {B}, {'0' if ks == 0 else D}")
    return out

def put(item):
    s, tag = item
    if callable(s):
        s()
    elif tag and tag != "pad":
        e.vm(s, tag)
    else:
        e(s)

def interleave(ms, fill):
    n = len(ms); k = 0
    for i, m in enumerate(ms):
        e(m)
        upto = math.ceil(len(fill) * (i + 1) / n)
        while k < upto:
            put(fill[k]); k += 1

def dma_groups(lst):
    groups = []; cur = []
    for it in lst:
        if it[1] == "pad":
            continue
        cur.append(it)
        if it[1]:
            groups.append(cur); cur = []
    if cur:
        groups[-1] += cur
    return groups

def main_loop(role, hooks):
    emit_list(dma_stage(0))
    code_touch()
    hooks.get("pre", lambda: None)()
    e(f"v_mov_b32 v{vS0}, 0\nv_mov_b32 v{vS1}, 0")
    q = [(0, g) for g in dma_groups(dma_stage(1))]
    for _ in range(OPT.get("pre1", 6)):
        g = q.pop(0)[1]
        if g[0][0].startswith("s_add_u32 m0") and g[1][1]: g = [g[0], ("s_nop 0", None)] + g[1:]
        emit_list(g)
    q += [(0, g) for g in dma_groups(dma_stage(2))]
    for st in range(3, 8):
        q += [(4 * (st - 3) + 3, g) for g in dma_groups(dma_stage(st))]
    q += [(23, g) for g in cgroups([0, 1, 2])] + [(27, g) for g in cgroups([3, 4, 5])] + [(31, g) for g in cgroups([6, 7]) + dgroups([0])]
    e.vm_wait("st0")
    e("s_barrier")
    stamp(1)
    for s in frag_reads(role, 0):
        e(s)
    DG = [4, 5, 6, 7]
    bt = b_touch() if OPT.get("bt") else []
    DG = OPT.get("dg", 0) and [1, 3, 5, 7] or DG
    for ks in range(32):
        stage, j = ks // 4, ks % 4
        gaps = [[] for _ in range(8)]
        if j == 3:
            gaps[0] += hooks.get(("pre_bar", stage), lambda: [])()
            if OPT.get("fine"):
                gaps[0].append((lambda stage=stage: stamp(16 + 2 * stage), None))
            if stage < 7:
                assert not any(it[1] == f"st{stage+1}" for _, g in q for it in g)
                gaps[0].append((lambda stage=stage: e.vm_wait(hooks.get(("wait", stage), [f"st{stage+1}"])), None))
            if not (OPT.get("nobar") and stage < 5): gaps[0].append(("s_barrier", None))
            if OPT.get("fine"):
                gaps[0].append((lambda stage=stage: stamp(17 + 2 * stage), None))
            gaps[3] += hooks.get(("post_bar", stage), lambda: [])()
        if ks < 31:
            RP = OPT.get("rpg", 2)
            for i, s in enumerate(frag_reads(role, ks + 1)):
                if OPT.get("nord") and 8 <= ks < 23: continue
                gaps[i // RP].append((s, None))
        if not OPT.get("nos"):
            so = s_ops(ks, 0) if j % 2 == 0 else s_ops(ks - 1, 1)
            if ks == 30: so += s_ops(30, 1)
            if ks == 31: so = []
            per = len(so) // 8
            for i, s in enumerate(so):
                gaps[i // per].append((s, None))
        rate = OPT.get("rate0", 4) if ks < OPT.get("ks0", 8) else (OPT.get("rate", 3) if ks < 23 else OPT.get("crate", 3))
        n = 0
        while n < rate and n < len(q) and q[n][0] <= ks: n += 1
        for i in range(n):
            g = q.pop(0)[1]
            if OPT.get("nodma") and 8 <= ks < 23: continue
            gi = DG[-n + i]
            if len(g) > 1 and isinstance(g[0][0], str) and g[0][0].startswith("s_add_u32 m0"):
                gaps[gi - 1].append(g[0]); g = g[1:]
            gaps[gi] += g
        if bt and ks >= OPT.get("btks", 10):
            gaps[7].append((bt.pop(0), None))
        e("s_waitcnt lgkmcnt(0)")
        for m, g in zip(mfmas(role, ks), gaps):
            e(m)
            for it in g:
                put(it)
    stamp(2)
    return [g for _, g in q]

def s_finish_write():
    return [("s_nop 0", None), (f"v_permlane32_swap_b32 v{vS0}, v{vS1}", None), ("s_nop 0", None),
            (f"v_add_f32 v{vS0}, v{vS0}, v{vS1}", None),
            (f"s_lshl_b32 s{sT2}, s{sWAVE}, 8", None),
            (f"v_lshl_add_u32 v{vST0}, v{vLANE}, 2, s{sT2}", None),
            (f"v_xor_b32 v{vST1}, 256, v{vST0}", None),
            (f"v_add_u32 v{vST0}, {L_XS}, v{vST0}", None),
            (f"v_add_u32 v{vST1}, {L_XS}, v{vST1}", None),
            (f"ds_write_b32 v{vST0}, v{vS0}", None), ("s_waitcnt lgkmcnt(0)", None)]
def s_finish_read():
    return [(f"ds_read_b32 v{vS1}, v{vST1}", None)]
def s_make_frags():
    e(f"""s_waitcnt lgkmcnt(0)
v_add_f32 v{vS0}, v{vS0}, v{vS1}
v_cmp_gt_u32 vcc, 32, v{vLANE}
v_cvt_pk_bf16_f32 v{vST0}, v{vS0}, v{vS0}
v_and_b32 v{vST1}, s{sMASK}, v{vST0}
v_sub_f32 v{vST1}, v{vS0}, v{vST1}
v_cvt_pk_bf16_f32 v{vST1}, v{vST1}, v{vST1}
v_cndmask_b32 v{vSF}, 0, v{vST0}, vcc
v_cndmask_b32 v{vSF+1}, 0, v{vST1}, vcc
v_cndmask_b32 v{vSF+4}, v{vST0}, 0, vcc
v_cndmask_b32 v{vSF+5}, v{vST1}, 0, vcc
v_mov_b32 v{vSF+2}, 0
v_mov_b32 v{vSF+3}, 0
v_mov_b32 v{vSF+6}, 0
v_mov_b32 v{vSF+7}, 0""")

def dbg_poll_issue():
    def f():
        srd(S_M, P_DBG, 256)
        e(f"v_min_u32 v2, 15, v{vLANE}\nv_lshlrev_b32 v2, 2, v2")
        e.vm(f"buffer_load_dword v3, v2, s[{S_M}:{S_M+3}], 0 offen sc1", "dbg")
    return [(f, None)]
def dbg_poll_check():
    spin_poll(3, 2, S_M, "0", first_loaded=True)

def flag_store(slot_code):
    e(slot_code)
    e(f"""s_lshl_b32 s{sT1}, s{sRB}, 1
s_add_u32 s{sT1}, s{sT1}, s{sTG}
s_lshl_b32 s{sT1}, s{sT1}, 6
s_add_u32 s{sT0}, s{sT0}, s{sT1}
s_lshl_b32 s{sT0}, s{sT0}, 7
s_add_u32 s{sT0}, s{sT0}, {WS_FLAG}
v_mov_b32 v2, 0
v_mov_b32 v3, 1
s_mov_b64 exec, 1""")
    e.vm(f"buffer_store_dword v3, v2, s[{S_WS}:{S_WS+3}], s{sT0} offen sc1", "flag")
    e("s_mov_b64 exec, -1")

LOG2E = 1.4426950408889634
def fbits(x):
    import struct
    return "0x%08x" % struct.unpack("<I", struct.pack("<f", x))[0]

def cfma(dst, x, y, z, tmp):
    e(f"v_pk_fma_f32 {vr(tmp,2)}, {vr(x,2)}, {vr(y,2)}, {vr(z,2)} op_sel:[1,1,0] op_sel_hi:[0,1,1] neg_lo:[0,1,0]")
    e(f"v_pk_fma_f32 {vr(dst,2)}, {vr(x,2)}, {vr(y,2)}, {vr(tmp,2)} op_sel:[0,0,0] op_sel_hi:[1,0,1]")
def cmul(dst, x, y, tmp):
    e(f"v_pk_mul_f32 {vr(tmp,2)}, {vr(x,2)}, {vr(y,2)} op_sel:[1,1] op_sel_hi:[0,1] neg_lo:[0,1]")
    e(f"v_pk_fma_f32 {vr(dst,2)}, {vr(x,2)}, {vr(y,2)}, {vr(tmp,2)} op_sel:[0,0,0] op_sel_hi:[1,0,1]")

def mfrag_fix():
    for b in range(4):
        T = vREC + 4 * b
        e(f"v_mov_b32 v{T+1}, v{T}\nv_mov_b32 v{T+2}, 0\nv_mov_b32 v{T+3}, 0")
def rank1(role):
    out = []
    for b in range(4):
        for c in range(2):
            A = vr(vSF + 4 * c, 4); B = vr(vREC + 4 * b, 4)
            if role == "ssm":
                A, B = B, A
            D = vr(acc(b, c), 16)
            out.append(f"v_mfma_f32_32x32x16_bf16 {D}, {A}, {B}, {D}")
    return out

vm_entry = list(e.vmq)
vA0, vA1, vA0x, vA1x, vOA, vDF, vYF, vFA, vPL = 84, 85, 86, 87, 88, 89, 90, 91, 92
vFX, vFD, vFS = 93, 94, 95
vWB = [40, 48]
vAB = 96
NB = 10
vZ, vXFf, vGt = 176, 192, 208
vXQ, vDQ, vRC = 224, 232, 240
sYA, sFG, sFL = sWOFF, sWSTEP, sMX
JIT = [8, 9, 10][3 - OPT.get('jit', 0):]
def p2_addrs(t):
    L = f"""s_lshl_b32 s{sT0}, s{sNG}, 10
v_lshl_add_u32 v{vA0}, v{vLANE}, 4, s{sT0}
v_xor_b32 v{vA1}, 1024, v{vA0}
s_lshl_b32 s{sT0}, s{sXB}, 2
s_add_u32 s{sT0}, s{sT0}, s{sQ}
s_mul_i32 s{sMW}, s{sT0}, {86*2048}
s_mul_i32 s{sT1}, s{sWAVE}, {22*2048}
s_add_u32 s{sMW}, s{sMW}, s{sT1}
s_lshl_b32 s{sYA}, s{sT0}, 17
s_lshl_b32 s{sT1}, s{sWAVE}, 15
s_add_u32 s{sYA}, s{sYA}, s{sT1}
s_add_u32 s{sYA}, s{sYA}, {WS_H}
s_lshl_b32 s{sT1}, s{sYX}, 11
s_add_u32 s{sYA}, s{sYA}, s{sT1}
s_lshr_b32 s{sT0}, s{sT0}, 1
s_lshl_b32 s{sT0}, s{sT0}, 13
s_add_u32 s{sFG}, s{sT0}, {WS_FLAG}
s_mul_i32 s{sT1}, s{sWAVE}, 11
v_min_u32 v{vDF}, 10, v{vLANE}
v_add_u32 v{vDF}, s{sT1}, v{vDF}
v_min_u32 v{vDF}, 42, v{vDF}
v_lshlrev_b32 v{vDF}, 7, v{vDF}
s_lshl_b32 s{sT1}, s{sWAVE}, 2
s_add_u32 s{sT1}, s{sT1}, 48
v_min_u32 v{vYF}, 3, v{vLANE}
v_add_u32 v{vYF}, s{sT1}, v{vYF}
v_lshlrev_b32 v{vYF}, 7, v{vYF}
s_lshl_b32 s{sT0}, s{sXB}, 8
s_lshr_b32 s{sT1}, s{sQ}, 1
s_lshl_b32 s{sT1}, s{sT1}, 7
s_add_u32 s{sT0}, s{sT0}, s{sT1}
s_and_b32 s{sT1}, s{sQ}, 1
s_lshl_b32 s{sT1}, s{sT1}, 5
s_add_u32 s{sT0}, s{sT0}, s{sT1}
s_lshl_b32 s{sT1}, s{sNG}, 4
s_add_u32 s{sT0}, s{sT0}, s{sT1}
v_bfe_u32 v{t}, v{vLANE}, 4, 1
v_and_b32 v{t+1}, 15, v{vLANE}
v_lshl_add_u32 v{t}, v{t}, 6, v{t+1}
v_add_u32 v{t}, s{sT0}, v{t}
s_lshl_b32 s{sT0}, s{sC0}, 6
s_lshl_b32 s{sT1}, s{sTG}, 5
s_add_u32 s{sT0}, s{sT0}, s{sT1}
s_lshl_b32 s{sT0}, s{sT0}, 1
v_and_b32 v{t+1}, 32, v{vLANE}
v_add_u32 v{vFD}, s{sT0}, v{t+1}
v_lshl_add_u32 v{vFX}, v{t}, 10, v{vFD}
s_lshl_b32 s{sT0}, s{sT0}, 1
v_lshrrev_b32 v{t+1}, 1, v{t+1}
v_lshl_add_u32 v{vOA}, v{t}, 11, v{t+1}
v_add_u32 v{vOA}, s{sT0}, v{vOA}
v_lshlrev_b32 v{vFS}, 4, v{t}
v_add_u32 v{vFS}, {WS_STAT}, v{vFS}
s_sub_u32 s{sT0}, s{sDM}, 11
s_and_b32 s{sT0}, s{sT0}, 0x7f000000
v_add_u32 v{vA0x}, s{sT0}, v{vA0}
v_add_u32 v{vA1x}, s{sT0}, v{vA1}
s_mov_b32 s{S_M}, s{P_D}
s_mov_b32 s{S_M+1}, s{P_D+1}
s_mov_b32 s{S_M+2}, 1024
s_mov_b32 s{S_M+3}, 0x00020000"""
    return [(x, None) for x in L.split("\n")]
def fin_loads():
    L = []
    for g in range(2):
        L.append((f"buffer_load_dwordx4 {ar(A_DN+4*g,4)}, v{vFX}, s[{S_X}:{S_X+3}], 0 offen offset:{16*g}", "fin"))
        L.append((f"buffer_load_dwordx4 {ar(A_DN+8+4*g,4)}, v{vFD}, s[{S_M}:{S_M+3}], 0 offen offset:{16*g}", "fin"))
    L.append((f"buffer_load_dwordx4 {ar(A_DN+16,4)}, v{vFS}, s[{S_WS}:{S_WS+3}], 0 offen sc1", "fin"))
    return L
DFLAG = (f"buffer_load_dword v{vPL}, v{vDF}, s[{S_WS}:{S_WS+3}], s{sFG} offen sc1", "dflag")
def flag_off(slot_code):
    e(slot_code)
    e(f"""s_lshl_b32 s{sT1}, s{sRB}, 1
s_add_u32 s{sT1}, s{sT1}, s{sTG}
s_lshl_b32 s{sT1}, s{sT1}, 6
s_add_u32 s{sT0}, s{sT0}, s{sT1}
s_lshl_b32 s{sT0}, s{sT0}, 7
s_add_u32 s{sFL}, s{sT0}, {WS_FLAG}""")
def flag_put(t):
    e(f"v_mov_b32 v{t}, 1\ns_mov_b64 exec, 1")
    e.vm(f"buffer_store_dword v{t}, v{vFA}, s[{S_WS}:{S_WS+3}], s{sFL} offen sc1", "flag")
    e("s_mov_b64 exec, -1")
e(f"""s_cmp_lt_u32 s{sWAVE}, 2
s_cselect_b32 s{S_W}, s{P_WG}, s{P_WU}
s_cselect_b32 s{S_W+1}, s{P_WG+1}, s{P_WU+1}
s_mov_b32 s{S_W+2}, {512*2752}
s_mov_b32 s{S_W+3}, 0x00020000
s_mov_b32 s{sWSTEP}, 1376
s_lshl_b32 s{sT2}, s{sTG}, 5
v_add_u32 v11, s{sT2}, v6
v_mul_u32_u24 v11, 2752, v11
s_lshl_b32 s{sT2}, s{sCT}, 7
v_add3_u32 v11, v11, v14, s{sT2}""")
for i in range(4):
    e(f"v_add_u32 v{vWV+i}, {8*2752*i - 1024*i}, v11")
def glu_pre():
    x_lds_addrs(f"""v_bfe_u32 v2, v{vLANE}, 4, 1
v_and_b32 v3, 15, v{vLANE}
v_lshl_add_u32 v2, v2, 6, v3""")
    e(f"""v_lshrrev_b32 v2, 5, v{vLANE}
v_bfe_u32 v3, v{vLANE}, 2, 2
v_lshl_add_u32 v2, v2, 3, v3
v_lshlrev_b32 v2, 7, v2
v_bfe_u32 v3, v{vLANE}, 4, 1
v_lshl_add_u32 v2, v3, 5, v2
v_and_b32 v3, 3, v{vLANE}
v_lshl_add_u32 v2, v3, 3, v2
v_bfe_u32 v3, v{vLANE}, 3, 1
v_xor_b32 v3, s{sNG}, v3
v_lshl_add_u32 v2, v3, 6, v2
s_lshl_b32 s{sT2}, s{sTG}, 11
s_add_u32 s{sT3}, s{sT2}, 32768
s_sub_u32 s{sT2}, 32768, s{sT2}
v_add_u32 v{vWA0}, s{sT3}, v2
v_add_u32 v{vWA0+1}, s{sT2}, v2
v_add_u32 v{vWA2}, {2*SLOT}, v{vWA0}
v_add_u32 v{vWA2+1}, {2*SLOT}, v{vWA0+1}""")
def stat_soff():
    e(f"""s_lshl_b32 s{sT2}, s{sRB}, 1
s_add_u32 s{sT2}, s{sT2}, s{sTG}
s_lshl_b32 s{sT3}, s{sT2}, 9
s_add_u32 s{sT3}, s{sT3}, {WS_R}
s_lshl_b32 s{sT2}, s{sT2}, 11
s_add_u32 s{sT2}, s{sT2}, {WS_STAT}""")
def glu_stats_load():
    dbg_poll_check()
    stat_soff()
    e(f"""v_bfe_u32 v4, v{vLANE}, 4, 1
v_and_b32 v5, 15, v{vLANE}
v_lshl_add_u32 v4, v4, 6, v5
v_lshlrev_b32 v4, 4, v4""")
    for b in range(4):
        e.vm(f"buffer_load_dwordx4 {vr(vREC+4*b,4)}, v4, s[{S_WS}:{S_WS+3}], s{sT2} offen offset:{256*b} sc1", "stats")
hooks = {"pre": glu_pre,
         ("post_bar", 5): dbg_poll_issue, ("wait", 6): ["st7", "dbg"],
         ("post_bar", 6): lambda: [(glu_stats_load, None)],
         ("pre_bar", 7): s_finish_write, ("post_bar", 7): s_finish_read}
left = main_loop("glu", hooks)
s_make_frags()
e.vm_wait("stats")
C1 = -2.0 * math.sqrt(2.0 / math.pi) * LOG2E
vK = 80
for b in range(4):
    T = vREC + 4 * b; K = vK + 4 * b
    e(f"""v_mul_f32 v{K}, {fbits(C1)}, v{T+1}
v_mul_f32 v{K+1}, v{T+1}, v{T+1}
v_mov_b32 v{K+2}, v{T+2}
v_mul_f32 v{K+1}, {fbits(0.044715)}, v{K+1}
v_mul_f32 v{K+1}, v{K+1}, v{K}""")
mfrag_fix()
side = [(x, None) for x in f"""s_lshl_b32 s{sT0}, s{sCT}, 1
s_add_u32 s{sT0}, s{sT0}, s{sNG}
s_lshl_b32 s{sT1}, s{sRB}, 1
s_add_u32 s{sT1}, s{sT1}, s{sTG}
s_mul_i32 s{sT1}, s{sT1}, {2*86*2048}
s_lshl_b32 s{sT2}, s{sT0}, 12
s_add_u32 s{sAOFF}, s{sT1}, s{sT2}
s_add_u32 s{sT4}, s{sAOFF}, {86*2048}
s_cmp_eq_u32 s{sT0}, 43
s_cselect_b32 s{sT2}, 0x7f000000, 0
v_lshl_add_u32 v2, v{vLANE}, 4, s{sT2}""".split("\n")] + calc_b_read_addrs(36)
n0 = OPT.get("n0", 0)
for g in left[:n0]: put(g[0]) if len(g) == 1 else [put(x) for x in g]
left = left[n0:]
e("s_nop 1")
interleave(rank1("glu"), side)
stamp(3)
TA, TB, WA, WB = 96, 98, 100, 102
vO = [104, 112]
st_ = []
for b in range(4):
    K = vK + 4 * b; O = vO[b & 1]
    for i in range(0, 8, 2):
        zA, zB = acc(b, 0) + 2 * i, acc(b, 0) + 2 * i + 2
        uA, uB = acc(b, 1) + 2 * i, acc(b, 1) + 2 * i + 2
        L = []
        for T, z in ((TA, zA), (TB, zB)):
            L.append(f"v_pk_mul_f32 {vr(T,2)}, {vr(z,2)}, {vr(z,2)}")
        for T in (TA, TB):
            L.append(f"v_pk_fma_f32 {vr(T,2)}, {vr(T,2)}, {vr(K,2)}, {vr(K,2)} op_sel:[0,1,0] op_sel_hi:[1,1,0]")
        for T, z in ((TA, zA), (TB, zB)):
            L.append(f"v_pk_mul_f32 {vr(T,2)}, {vr(T,2)}, {vr(z,2)}")
        for r in (TA, TA + 1, TB, TB + 1):
            L.append(f"v_exp_f32 v{r}, v{r}")
        for W, z, u in ((WA, zA, uA), (WB, zB, uB)):
            L.append(f"v_pk_mul_f32 {vr(W,2)}, {vr(z,2)}, {vr(u,2)}")
        for T in (TA, TB):
            L.append(f"v_pk_fma_f32 {vr(T,2)}, {vr(T,2)}, {vr(K+2,2)}, {vr(K+2,2)} op_sel:[0,0,0] op_sel_hi:[1,0,0]")
        for r in (TA, TA + 1, TB, TB + 1):
            L.append(f"v_rcp_f32 v{r}, v{r}")
        for W, T in ((WA, TA), (WB, TB)):
            L.append(f"v_pk_mul_f32 {vr(W,2)}, {vr(W,2)}, {vr(T,2)}")
        L.append(f"v_cvt_pk_bf16_f32 v{O+i}, v{WA}, v{WA+1}")
        L.append(f"v_cvt_pk_bf16_f32 v{O+i+1}, v{WB}, v{WB+1}")
        st_ += [(x, None) for x in L]
        if i in (2, 6):
            fr = i >> 2
            so = sAOFF if b < 2 else sT4
            st_.append((f"buffer_store_dwordx4 {vr(O+4*fr,4)}, v2, s[{S_WS}:{S_WS+3}], s{so} offen offset:{1024*(b&1) + 2048*fr} sc1", "hh"))
def R0(): return [[waitv("C2")]] + atoms(read_cunit(0) + read_cunit(1) + read_cunit(2), 2) + [rebase_ca()]
def R1(): return [[waitv("C5")]] + atoms(read_cunit(3) + read_cunit(4) + read_cunit(5), 2)
def R2(): return [[waitv("D0")]] + atoms(read_cunit(6) + read_cunit(7) + read_dunit_agpr(0), 2)
def R3(): return [[waitv("D3")]] + atoms(read_dunit_agpr(1) + read_dunit_agpr(2) + read_dunit_agpr(3), 2)
def bseq(left):
    c35 = [g for g in left if any(it[1] in ("C3", "C4", "C5") for it in g)]
    rest = [g for g in left if g not in c35]
    return c35 + rest + [[LGKM0]] + dgroups([1, 2, 3]) + R1() + [[LGKM0]] + dgroups([4, 5, 6]) + R2() + [[LGKM0]] + dgroups([u for u in (7, 8, 9) if u not in JIT]) + R3() + [[LGKM0]] + dgroups([u for u in (10,) if u not in JIT])
def take(seq, n):
    k = 0
    for i, g in enumerate(seq):
        if k == n: return seq[:i], seq[i:]
        if any(it[1] for it in g): k += 1
    return seq, []
seq = bseq(left)
p1, seq = take(seq, OPT.get("nepi", 14))
f0, f1 = OPT.get("f0", 10), OPT.get("f1", 75)
st_ = sprinkle(st_, R0(), 0, 30)
for it in sprinkle(st_, p1, len(st_) * f0 // 100, len(st_) * f1 // 100): put(it)
stamp(4)
p1, seq = take(seq, OPT.get("npre", 8))
flag_off(f"s_lshl_b32 s{sT0}, s{sCT}, 1\ns_add_u32 s{sT0}, s{sT0}, s{sNG}")
e(f"v_mov_b32 v{vFA}, 0")
for it in sprinkle(p2_addrs(2), p1): put(it)
e.vm_wait("hh")
flag_put(2)
e(f"v_mov_b32 v{vFA}, 0x7f000000")
stamp(5)
for it in fin_loads() + flat(seq) + [DFLAG]: put(it)
stamp(7)
e.vm_wait("dflag")
spin_poll(vPL, vDF, S_WS, f"s{sFG}", first_loaded=True)
e("s_branch L_phase2")

e.vmq = list(vm_entry)
e("L_ssm:")
vA, vCF, vq, vQ = 8, 10, 12, 6
e(f"""s_lshl_b32 s{sT1}, s{sT1}, 1
s_add_u32 s{sCT}, s{sT1}, s{sT0}
s_cmp_lt_u32 s{sWAVE}, 2
s_cselect_b32 s{S_W}, s{P_BRE}, s{P_BIM}
s_cselect_b32 s{S_W+1}, s{P_BRE+1}, s{P_BIM+1}
s_mov_b32 s{S_W+2}, 524288
s_mov_b32 s{S_W+3}, 0x00020000
s_mov_b32 s{sWSTEP}, 1
s_lshl_b32 s{sT2}, s{sTG}, 5
s_lshl_b32 s{sT3}, s{sCT}, 6
s_add_u32 s{sT2}, s{sT2}, s{sT3}
v_add_u32 v11, s{sT2}, v6
v_lshlrev_b32 v11, 10, v11
v_add_u32 v12, v11, v9
v_add_u32 v13, v11, v10""")
for i in range(4):
    e(f"v_add_u32 v{vWV+i}, {7168*i}, v{12 + (i&1)}")
e(f"""v_and_b32 v14, 19, v{vLANE}
v_bfe_u32 v2, v{vLANE}, 2, 1
v_lshl_or_b32 v14, v2, 3, v14
v_bfe_u32 v2, v{vLANE}, 3, 1
v_lshl_or_b32 v14, v2, 2, v14
s_lshl_b32 s{sT2}, s{sNG}, 5
v_add_u32 v14, s{sT2}, v14
v_add_u32 v2, s{sT3}, v14
v_lshlrev_b32 v2, 1, v2""")
for k_, (p, r) in enumerate(((P_LRE, vREC), (P_LIM, vREC + 1), (P_LDT, vREC + 2))):
    srd(S_M, p, 1024)
    e.vm(f"buffer_load_ushort v{r}, v2, s[{S_M}:{S_M+3}], 0 offen", "cst")
def ssm_pre():
    x_lds_addrs(f"""v_bfe_u32 v2, v{vLANE}, 2, 1
v_and_b32 v3, 3, v{vLANE}
v_lshl_add_u32 v2, v2, 6, v3
v_bfe_u32 v3, v{vLANE}, 3, 2
v_lshl_add_u32 v2, v3, 2, v2""")
    e(f"""v_lshrrev_b32 v3, 5, v{vLANE}
v_bfe_u32 v4, v14, 1, 3
v_xor_b32 v4, v4, v3
s_lshl_b32 s{sT2}, s{sTG}, 1
v_xor_b32 v4, s{sT2}, v4
v_lshlrev_b32 v2, 7, v14
v_add_u32 v2, 32768, v2""")
    for j in range(4):
        e(f"""v_xor_b32 v5, {2*j}, v4
v_lshl_add_u32 v{vWA0+j}, v5, 4, v2
v_add_u32 v{vWA2+j}, {2*SLOT}, v{vWA0+j}""")
    e.vm_wait("cst")
    lre, lim, t0, t1, t2, t3 = vREC, vREC + 1, vREC + 2, vREC + 3, vREC + 4, vREC + 5
    e(f"""v_lshlrev_b32 v{lre}, 16, v{lre}
v_lshlrev_b32 v{lim}, 16, v{lim}
v_lshlrev_b32 v{t0}, 16, v{t0}
v_mul_f32 v{t0}, {fbits(LOG2E)}, v{t0}
v_exp_f32 v{t0}, v{t0}
s_nop 0
v_cvt_pk_bf16_f32 v{t0}, v{t0}, v{t0}
v_and_b32 v{t0}, s{sMASK}, v{t0}
v_mul_f32 v{t1}, v{t0}, v{lre}
v_mul_f32 v{t2}, v{t0}, v{lim}
v_mul_f32 v{t1}, {fbits(LOG2E)}, v{t1}
v_mul_f32 v{t2}, {fbits(1/(2*math.pi))}, v{t2}
v_exp_f32 v{t1}, v{t1}
v_rndne_f32 v{t3}, v{t2}
v_sub_f32 v{t2}, v{t2}, v{t3}
v_cos_f32 v{t3}, v{t2}
v_sin_f32 v{t2}, v{t2}
v_mul_f32 v{vA}, v{t1}, v{t3}
v_mul_f32 v{t0}, v{lre}, v{lre}
v_mul_f32 v{vA+1}, v{t1}, v{t2}
v_fmac_f32 v{t0}, v{lim}, v{lim}
v_add_f32 v{t1}, -1.0, v{vA}
v_rcp_f32 v{t0}, v{t0}
v_mul_f32 v{t2}, v{t1}, v{lre}
v_mul_f32 v{t3}, v{vA+1}, v{lre}
v_fmac_f32 v{t2}, v{vA+1}, v{lim}
v_fma_f32 v{t3}, -v{t1}, v{lim}, v{t3}
v_add_f32 v{t0}, v{t0}, v{t0}
v_mul_f32 v{vCF}, v{t2}, v{t0}
v_mul_f32 v{vCF+1}, v{t3}, v{t0}""")
    cmul(vq, vA, vA, 2)
    for _ in range(5):
        cmul(4, vq, vq, 2)
        e(f"v_mov_b32 v{vq}, v4\nv_mov_b32 v{vq+1}, v5")
    cmul(4, vq, vq, 2)
    cmul(vQ, 4, 4, 2)
def ssm_stats_load():
    dbg_poll_check()
    stat_soff()
    e(f"""v_bfe_u32 v4, v{vLANE}, 2, 1
v_and_b32 v5, 3, v{vLANE}
v_lshl_add_u32 v4, v4, 6, v5
v_bfe_u32 v5, v{vLANE}, 3, 2
v_lshl_add_u32 v4, v5, 2, v4
v_lshlrev_b32 v4, 4, v4""")
    for b in range(4):
        e.vm(f"buffer_load_dword v{vREC+4*b}, v4, s[{S_WS}:{S_WS+3}], s{sT2} offen offset:{256*b} sc1", "stats")
    e(f"v_lshlrev_b32 v4, 3, v{vLANE}")
    e.vm(f"buffer_load_dwordx2 v[2:3], v4, s[{S_WS}:{S_WS+3}], s{sT3} offen sc1", "stats")
hooks = {"pre": ssm_pre,
         ("post_bar", 5): dbg_poll_issue, ("wait", 6): ["st7", "dbg"],
         ("post_bar", 6): lambda: [(ssm_stats_load, None)],
         ("pre_bar", 7): s_finish_write, ("post_bar", 7): s_finish_read}
left = main_loop("ssm", hooks)
s_make_frags()
e.vm_wait("stats")
mfrag_fix()
e(f"""s_lshl_b32 s{sT0}, s{sWAVE}, 9
s_add_u32 s{sT0}, s{sT0}, {L_XR}
v_lshl_add_u32 v4, v{vLANE}, 3, s{sT0}
v_lshrrev_b32 v5, 5, v{vLANE}
ds_write_b64 v4, v[2:3]
v_lshl_add_u32 v4, v5, 8, s{sT0}""")
interleave(rank1("ssm"), calc_b_read_addrs(32))
vR = 32
for b in range(4):
    for g in range(4):
        e(f"ds_read_b128 {vr(vR+16*b+4*g,4)}, v4 offset:{64*b+16*g}")
stamp(3)
def Ub(b): return 96 if b == 0 else acc(b - 1, 0)
def cfma_l(dst, x, y, z, tmp):
    return [(f"v_pk_fma_f32 {vr(tmp,2)}, {vr(x,2)}, {vr(y,2)}, {vr(z,2)} op_sel:[1,1,0] op_sel_hi:[0,1,1] neg_lo:[0,1,0]", None),
            (f"v_pk_fma_f32 {vr(dst,2)}, {vr(x,2)}, {vr(y,2)}, {vr(tmp,2)} op_sel:[0,0,0] op_sel_hi:[1,0,1]", None)]
st_ = []
for b in range(4):
    for r in range(16):
        U = Ub(b) + 2 * r; o = r & 1
        st_.append((f"v_pk_mul_f32 {vr(U,2)}, {vr(acc(b,0)+(r&~1),2)}, {vr(vCF,2)} op_sel:[{o},0] op_sel_hi:[{o},1]", None))
    for r in range(16):
        U = Ub(b) + 2 * r; o = r & 1
        st_.append((f"v_pk_fma_f32 {vr(U,2)}, {vr(acc(b,1)+(r&~1),2)}, {vr(vCF,2)}, {vr(U,2)} op_sel:[{o},1,0] op_sel_hi:[{o},0,1] neg_lo:[0,1,0]", None))
st_.append(LGKM0)
for t in range(64):
    b, r = t >> 4, t & 15
    U = Ub(b) + 2 * r; o = t & 1
    st_.append((f"v_pk_mul_f32 {vr(U,2)}, {vr(U,2)}, {vr(vR+(t&~1),2)} op_sel:[0,{o}] op_sel_hi:[1,{o}]", None))
    if t == 1:
        st_ += cfma_l(4, Ub(0), vA, U, 2)
    elif t > 1:
        st_ += cfma_l(4, 4, vA, U, 2)
seq = bseq(left)
p1, seq = take(seq, OPT.get("nssm1", 9))
st_ = sprinkle(st_, R0(), 0, 30)
for it in sprinkle(st_, p1, 30, len(st_)): put(it)
vE = 72
e(f"""v_and_b32 v32, 31, v{vLANE}
s_lshl_b32 s{sT0}, s{sNG}, 8
s_add_u32 s{sT0}, s{sT0}, {L_XE}
v_lshl_add_u32 v32, v32, 3, s{sT0}
v_lshrrev_b32 v33, 5, v{vLANE}
s_lshl_b32 s{sT0}, s{sTG}, 10
v_lshl_add_u32 v33, v33, 9, s{sT0}
v_add_u32 v33, v33, v32
ds_write_b64 v33, v[4:5]
s_waitcnt lgkmcnt(0)
s_barrier""")
for s_ in range(4):
    e(f"ds_read_b64 {vr(vE+2*s_,2)}, v32 offset:{512*s_}")
e(f"""s_lshl_b32 s{sT0}, s{sCT}, 1
s_add_u32 s{sT0}, s{sT0}, s{sNG}
s_lshl_b32 s{sT0}, s{sT0}, 9
v_and_b32 v34, 31, v{vLANE}
v_lshl_add_u32 v34, v34, 4, s{sT0}
s_lshl_b32 s{sT4}, s{sRB}, 13
s_add_u32 s{sT4}, s{sT4}, {WS_AGG}
s_waitcnt lgkmcnt(0)""")
P2, P3, AG = 36, 38, 40
cfma(P2, vE, vq, vE + 2, 2)
cfma(P3, P2, vq, vE + 4, 2)
cfma(AG, P3, vq, vE + 6, 2)
e(f"""v_mov_b32 v44, v{AG}
v_mov_b32 v45, 1
v_mov_b32 v46, v{AG+1}
v_mov_b32 v47, 1
s_cmp_eq_u32 s{sTG}, 0
s_cselect_b32 s{sT0}, 0, 0x7f000000
v_add_u32 v35, s{sT0}, v34
s_mov_b32 exec_hi, 0""")
e.vm(f"buffer_store_dwordx4 v[44:47], v35, s[{S_WS}:{S_WS+3}], s{sT4} offen sc1", "pub")
e("s_mov_b64 exec, -1")
stamp(4)
vM, vPd, q2, q3 = 252, 254, 48, 50
st_ = []
sv = e.lines; e.lines = []
cmul(q2, vq, vq, 2)
cmul(q3, q2, vq, 2)
e(f"""s_cmp_eq_u32 s{sTG}, 1
s_cselect_b64 vcc, -1, 0
v_cndmask_b32 v52, 1.0, v{q2}, vcc
v_cndmask_b32 v53, 0, v{q2+1}, vcc
v_cndmask_b32 v54, 0, v{P2}, vcc
v_cndmask_b32 v55, 0, v{P2+1}, vcc
v_cndmask_b32 v56, v{vq}, v{q3}, vcc
v_cndmask_b32 v57, v{vq+1}, v{q3+1}, vcc
v_cndmask_b32 v58, v{vE}, v{P3}, vcc
v_cndmask_b32 v59, v{vE+1}, v{P3+1}, vcc
v_cmp_lt_u32 vcc, 31, v{vLANE}
s_nop 1
v_cndmask_b32 v{vM}, v52, v56, vcc
v_cndmask_b32 v{vM+1}, v53, v57, vcc
v_cndmask_b32 v{vPd}, v54, v58, vcc
v_cndmask_b32 v{vPd+1}, v55, v59, vcc""")
vI = 60
e(f"""v_bfe_u32 v52, v{vLANE}, 4, 1
v_lshrrev_b32 v53, 5, v{vLANE}
v_and_b32 v54, 1, v{vLANE}
v_lshlrev_b32 v54, 4, v54
v_mov_b32 v55, 0x3f80
v_lshlrev_b32 v54, v54, v55
v_cmp_eq_u32 vcc, v52, v53
v_bfe_u32 v55, v{vLANE}, 1, 3
s_nop 0
v_cndmask_b32 v54, 0, v54, vcc""")
for k_ in range(8):
    e(f"v_cmp_eq_u32 vcc, {k_}, v55\ns_nop 1\nv_cndmask_b32 v{vI+k_}, 0, v54, vcc")
vG = 224
for i in range(7):
    e(f"v_mov_b32 v{vG+4*i}, 0\nv_mov_b32 v{vG+4*i+1}, 1\nv_mov_b32 v{vG+4*i+2}, 0\nv_mov_b32 v{vG+4*i+3}, 1")
flag_off(f"s_lshl_b32 s{sT0}, s{sCT}, 1\ns_add_u32 s{sT0}, s{sT0}, s{sNG}\ns_add_u32 s{sT0}, s{sT0}, 48")
e(f"v_mov_b32 v{vFA}, 0")
st_ = [(x.strip(), None) for x in e.lines] + p2_addrs(52); e.lines = sv
p1, seq = take(seq, OPT.get("nssm2", 28))
for it in sprinkle(st_, p1, 8) + fin_loads(): put(it)
Lp, Lc, Ld = e.label("agg"), e.label("aggc"), e.label("aggd")
e(f"s_mov_b32 s{sCNT}, {SPIN}\n{Lp}:")
for i in range(7):
    e(f"""s_cmp_le_u32 s{sRB}, {i}
s_cbranch_scc1 {Lc}
s_sub_u32 s{sT0}, s{sT4}, {8192*(i+1)}
buffer_load_dwordx4 {vr(vG+4*i,4)}, v34, s[{S_WS}:{S_WS+3}], s{sT0} offen sc1""")
e(f"{Lc}:\ns_waitcnt vmcnt(0)")
e.vmq = []
e(f"v_and_b32 v52, v{vG+1}, v{vG+3}")
for i in range(1, 7):
    e(f"v_and_b32 v53, v{vG+4*i+1}, v{vG+4*i+3}\nv_and_b32 v52, v52, v53")
e(f"""v_cmp_ne_u32 vcc, 0, v52
s_nop 1
s_cmp_eq_u64 vcc, -1
s_cbranch_scc1 {Ld}
s_sub_u32 s{sCNT}, s{sCNT}, 1
s_cbranch_scc1 {Ld}
s_branch {Lp}
{Ld}:""")
for i in range(7):
    e(f"v_mov_b32 v{vG+4*i+1}, v{vG+4*i+2}")
cfma(4, vG + 24, vQ, vG + 20, 2)
for i in range(4, -1, -1):
    cfma(4, 4, vQ, vG + 4 * i, 2)
cfma(4, 4, vM, vPd, 2)
stamp(5)
e(f"""s_lshl_b32 s{sT0}, s{sCT}, 1
s_add_u32 s{sT0}, s{sT0}, s{sNG}
s_lshl_b32 s{sT0}, s{sT0}, 13
s_lshl_b32 s{sT1}, s{sRB}, 1
s_add_u32 s{sT1}, s{sT1}, s{sTG}
s_lshl_b32 s{sT1}, s{sT1}, 18
s_add_u32 s{sT0}, s{sT0}, s{sT1}
s_add_u32 s{sAOFF}, s{sT0}, {WS_H}
v_lshlrev_b32 v34, 4, v{vLANE}""")
put(DFLAG)
vP = 68
vO2 = 36
def d2_out(b):
    out = []
    for ci in range(2):
        out.append((f"s_add_u32 s{sT0}, s{sAOFF}, {(b>>1)*64*2048 + ci*4096}", None))
        for fr in range(2):
            for i in range(4):
                r = Ub(b) + 16 * ci + 8 * fr + 2 * i
                out.append((f"v_cvt_pk_bf16_f32 v{vO2+8*ci+4*fr+i}, v{r}, v{r+1}", None))
            out.append((f"buffer_store_dwordx4 {vr(vO2+8*ci+4*fr,4)}, v34, s[{S_WS}:{S_WS+3}], s{sT0} offen offset:{1024*(b&1)+2048*fr} sc1", "h"))
    return out
for b in range(4):
    st_ = []
    for r in range(16):
        U = Ub(b) + 2 * r
        st_ += cfma_l(U, 4 if r == 0 else U - 2, vA, U, 2)
    p1, seq = take(seq, OPT.get("nssm5", 0))
    for it in sprinkle(st_, p1): put(it)
    for i in range(8):
        U = Ub(b) + 4 * i
        e(f"v_cvt_pk_bf16_f32 v{vP+i}, v{U}, v{U+2}")
    for i in range(8):
        U = Ub(b) + 4 * i
        e(f"v_cvt_pk_bf16_f32 v{vP+8+i}, -v{U+1}, -v{U+3}")
    e(f"v_mov_b32 v4, v{Ub(b)+30}\nv_mov_b32 v5, v{Ub(b)+31}")
    ms = []
    for h_ in range(2):
        for ci in range(2):
            D = vr(Ub(b) + 16 * ci, 16)
            ms.append(f"v_mfma_f32_32x32x16_bf16 {D}, {vr(vP+8*ci+4*h_,4)}, {vr(vI+4*h_,4)}, {D if h_ else '0'}")
    interleave(ms, d2_out(b - 1) if b else [])
e("s_nop 11")
for it in d2_out(3): put(it)
stamp(14)
if OPT.get("nodefer"):
    p1, seq = take(seq, OPT.get("nssm3", 10))
    for it in flat(p1): put(it)
    e.vm_wait("h")
    flag_put(2)
    e(f"v_mov_b32 v{vFA}, 0x7f000000")
for it in flat(seq): put(it)
stamp(6)
e.vm_wait("dflag")
spin_poll(vPL, vDF, S_WS, f"s{sFG}", first_loaded=True)
e("s_branch L_phase2")

e.vmq = list(vm_entry)
e("; ---------------- stats role")
e("L_stats:")
e(f"""s_sub_u32 s{sCT}, s{sCT}, 22
s_lshl_b32 s{sT0}, s{sRB}, 1
s_add_u32 s{sT4}, s{sT0}, s{sCT}
s_lshl_b32 s{sT0}, s{sT4}, 7
s_lshl_b32 s{sT1}, s{sWAVE}, 5
s_add_u32 s{sT5}, s{sT0}, s{sT1}
v_add_u32 v2, s{sT5}, v8
v_lshlrev_b32 v2, 10, v2
v_and_b32 v3, 15, v{vLANE}
v_lshl_add_u32 v2, v3, 4, v2""")
for u in range(8):
    e(f"s_mov_b32 s{sT0}, {4096*u}")
    for i in range(4):
        e.vm(f"buffer_load_dwordx4 {vr(128+16*u+4*i,4)}, v2, s[{S_X}:{S_X+3}], s{sT0} offen offset:{256*i}", f"x{u}")
e(f"""v_mov_b32 v4, 0
v_mov_b32 v5, 0
v_mov_b32 v6, 0
v_mov_b32 v7, 0
s_lshl_b32 s{sT0}, s{sT4}, 12
s_add_u32 s{sT0}, s{sT0}, {WS_AGG}
v_lshlrev_b32 v9, 4, v0""")
e.vm(f"buffer_store_dwordx4 v[4:7], v9, s[{S_WS}:{S_WS+3}], s{sT0} offen sc1", "z")
e(f"""s_lshl_b32 s{sT0}, s{sT4}, 13
s_lshl_b32 s{sT1}, s{sWAVE}, 11
s_add_u32 s{sT0}, s{sT0}, s{sT1}
s_add_u32 s{sT0}, s{sT0}, {WS_FLAG}
v_lshlrev_b32 v9, 7, v3""")
e.vm(f"buffer_store_dword v4, v9, s[{S_WS}:{S_WS+3}], s{sT0} offen sc1", "z")
if OPT.get("bt"):
    for f in b_touch(): f()
e("v_mov_b32 v10, 0x3f803f80")
vSU, vSQ = 64, 72
for u in range(8):
    e.vm_wait(f"x{u}")
    d = 128 + 16 * u
    e(f"v_dot2_f32_bf16 v{vSU+u}, v{d}, v10, 0\nv_dot2_f32_bf16 v{vSQ+u}, v{d}, v{d}, 0")
    e("s_nop 1")
    for i in range(1, 16):
        e(f"v_dot2_f32_bf16 v{vSU+u}, v{d+i}, v10, v{vSU+u}\nv_dot2_f32_bf16 v{vSQ+u}, v{d+i}, v{d+i}, v{vSQ+u}")
e("s_nop 2")
for sh in (8, 4, 2, 1):
    for r in range(vSU, vSU + 16):
        e(f"v_add_f32_dpp v{r}, v{r}, v{r} row_ror:{sh} row_mask:0xf bank_mask:0xf")
for u in range(1, 8):
    e(f"v_cmp_eq_u32 vcc, {u}, v3\ns_nop 1\nv_cndmask_b32 v{vSU}, v{vSU}, v{vSU+u}, vcc\nv_cndmask_b32 v{vSQ}, v{vSQ}, v{vSQ+u}, vcc")
e(f"""v_mul_f32 v7, {fbits(1/512)}, v{vSU}
v_mul_f32 v6, {fbits(1/512)}, v{vSQ}
v_fma_f32 v6, -v7, v7, v6
v_max_f32 v6, 0, v6
v_add_f32 v6, {fbits(1e-5)}, v6
v_rsq_f32 v5, v6
v_cvt_pk_bf16_f32 v4, -v7, -v7
v_and_b32 v9, s{sMASK}, v4
v_sub_f32 v9, -v7, v9
v_cvt_pk_bf16_f32 v9, v9, v9
v_lshrrev_b32 v4, 16, v4
v_and_or_b32 v4, v9, s{sMASK}, v4
v_lshl_add_u32 v9, v3, 2, v8
v_add_u32 v9, s{sT5}, v9
v_lshlrev_b32 v11, 4, v9
v_lshlrev_b32 v12, 2, v9
v_cmp_gt_u32 vcc, 8, v3
s_mov_b32 s{sT0}, {WS_STAT}
s_mov_b32 s{sT1}, {WS_R}
s_mov_b64 exec, vcc""")
e.vm(f"buffer_store_dwordx4 v[4:7], v11, s[{S_WS}:{S_WS+3}], s{sT0} offen sc1", "z")
e.vm(f"buffer_store_dword v5, v12, s[{S_WS}:{S_WS+3}], s{sT1} offen sc1", "z")
e("s_mov_b64 exec, -1")
e.vm_wait_all()
e("s_barrier")
srd(S_M, P_DBG, 256)
Lns = e.label("nosig")
e(f"""s_cmp_eq_u32 s{sWAVE}, 0
s_cbranch_scc0 {Lns}
s_lshl_b32 s{sT0}, s{sT4}, 2
v_mov_b32 v2, 0
v_mov_b32 v3, 1
s_mov_b64 exec, 1
buffer_store_dword v3, v2, s[{S_M}:{S_M+3}], s{sT0} offen sc1
s_mov_b64 exec, -1
{Lns}:""")
stamp(20 if 'leak' in OPT else 1)
e(f"v_min_u32 v2, 15, v{vLANE}\nv_lshlrev_b32 v2, 2, v2")
spin_poll(3, 2, S_M, "0")
stamp(21 if 'leak' in OPT else 2)

for it in calc_b_read_addrs(4) + flat(cgroups(range(8)) + dgroups([0])): put(it)
for it in flat(R0() + bseq([])): put(it)
e(f"v_mov_b32 v{vFA}, 0x7f000000\ns_mov_b32 s{sFL}, 0")
for it in p2_addrs(2) + fin_loads(): put(it)
spin_poll(vPL, vDF, S_WS, f"s{sFG}")

e("; ---------------- phase 2")
e("L_phase2:")
e.vmq = ["?"]
stamp(8)
vRW, vRR, vRW2, vL16, vYR = 32, 35, 12, 7, 37
srd(S_M, P_OUT, 4194304)
sv = e.lines; e.lines = []
e(f"v_lshlrev_b32 v{vL16}, 4, v{vLANE}")
for i in range(1, 4):
    e(f"s_xor_b32 s{sT0}, s{sWAVE}, {i}")
    if i < 3:
        e(f"s_mul_i32 s{sT0}, s{sT0}, 12288\ns_add_u32 s{sT1}, s{sT0}, {2*SLOT + 4096*i}")
    else:
        e(f"s_lshl_b32 s{sT1}, s{sT0}, 12\ns_add_u32 s{sT1}, s{sT1}, {L_MISC}\ns_mul_i32 s{sT0}, s{sT0}, 12288")
    e(f"v_add_u32 v{vRW+i-1}, s{sT1}, v{vL16}\ns_add_u32 s{sT0}, s{sT0}, {4096*(i-1)}\nv_add_u32 v{vRW2+i-1}, s{sT0}, v{vL16}")
e(f"""s_lshl_b32 s{sT0}, s{sWAVE}, 12
s_add_u32 s{sT0}, s{sT0}, {L_MISC}
v_add_u32 v{vRR}, s{sPB0}, v{vL16}
v_add_u32 v{vRR+1}, s{sT0}, v{vL16}
v_add_u32 v{vYR}, s{sPB1}, v{vL16}""")
for k_ in range(8):
    j_ = (k_ & 1) + 2 * [0, 2, 1, 3][k_ >> 1]
    e(f"""v_lshlrev_b32 v{vXFf+2*k_}, 16, v{vXQ+j_}
v_and_b32 v{vXFf+2*k_+1}, s{sMASK}, v{vXQ+j_}
v_lshlrev_b32 v{vGt+2*k_}, 16, v{vDQ+j_}
v_and_b32 v{vGt+2*k_+1}, s{sMASK}, v{vDQ+j_}""")
for r in range(16):
    e(f"v_sub_f32 v{vZ+r}, v{vXFf+r}, v{vRC+3}\nv_mul_f32 v{vGt+r}, v{vGt+r}, v{vRC+1}\nv_mul_f32 v{vZ+r}, v{vZ+r}, v{vGt+r}")
pre_ = [(x.strip(), None) for x in e.lines]; e.lines = sv
def a_loads(ks, tag, y=False):
    B = vAB + 8 * ((ks + (22 if y else 0)) % NB)
    a0, a1 = (vA0x, vA1x) if (ks >= 20) else (vA0, vA1)
    o = 0 if y else 2048 * (ks & 1)
    L = [[(f"buffer_load_dwordx4 {vr(B,4)}, v{a0}, s[{S_WS}:{S_WS+3}], s{sXOFF} offen offset:{o} sc1", tag)],
         [(f"buffer_load_dwordx4 {vr(B+4,4)}, v{a1}, s[{S_WS}:{S_WS+3}], s{sXOFF} offen offset:{o} sc1", tag)]]
    if y:
        L[0].insert(0, (f"s_xor_b32 s{sXOFF}, s{sYA}, {2048*ks}", None))
    elif ks & 1 == 0:
        L[0] = [(f"s_lshl_b32 s{sXOFF}, s{sDA}, 12", None), (f"s_add_u32 s{sXOFF}, s{sXOFF}, s{sMW}", None)] + L[0]
        L[1].append((lambda: e(f"s_add_u32 s{sDA}, s{sDA}, 1\ns_cmp_eq_u32 s{sDA}, s{sDM}\ns_cselect_b32 s{sDA}, 0, s{sDA}"), None))
    return L
def p2_mfmas(D0, wreg, ks, first):
    out = []
    for i in range(4):
        D = ar(D0 + 16 * i, 16)
        out.append(f"v_mfma_f32_32x32x16_bf16 {D}, {wreg(i & 1)}, {vr(vAB + 8*((ks + (22 if D0 == A_Y else 0)) % NB) + 4*(i>>1), 4)}, {'0' if first else D}")
    return out
def wd_reads(ks):
    out = []
    for dblk in range(2):
        r0 = vWB[ks & 1] + 4 * dblk
        out += dfrag_reads(ks >> 1, ks & 1, dblk, lambda o, r0=r0: vr(r0 + o, 2))
    return out
LEAD = OPT.get("lead", 6)
q = [g for ks in range(22) for g in a_loads(ks, f"a{ks}")] + [g for ks in range(16) for g in a_loads(ks, f"y{ks}", True)]
for it in flat(q[:2 * LEAD]): put(it)
q = q[2 * LEAD:]
for r in range(20):
    e(f"v_accvgpr_read_b32 v{vXQ+r}, a{A_DN+r}")
for base in (vXQ, vDQ):
    for k_ in (0, 1, 4, 5):
        e(f"v_permlane32_swap_b32 v{base+k_}, v{base+k_+2}")
xq = dgroups(JIT)
KY = 22 - LEAD
for ks in range(22):
    e.vm_wait(f"a{ks}")
    if ks >= 8:
        e("s_waitcnt lgkmcnt(0)")
    gaps = [[] for _ in range(4)]
    if ks == 0:
        gaps[0].append((lambda: flag_put(2), None))
    if ks == 7:
        gaps[3].append(("s_barrier", None))
    for gi in (0, 1):
        if xq: gaps[gi] += xq.pop(0)
    for gi in range(4):
        k_ = 4 if gi < 2 else 3
        gaps[gi] += pre_[:k_]; pre_ = pre_[k_:]
    if 8 <= ks + 1 < 22:
        w_ = wd_reads(ks + 1)
        if (ks + 1) % 2 == 0 and (ks + 1) >> 1 in JIT: gaps[0].append(waitv(f"D{(ks+1)>>1}"))
        gaps[0] += w_[:2]; gaps[1] += w_[2:]
    if ks == KY - 3:
        gaps[0].append((f"buffer_load_dword v{vPL}, v{vYF}, s[{S_WS}:{S_WS+3}], s{sFG} offen sc1", "yflag"))
    if ks == KY:
        def chk():
            e.vm_wait("yflag")
            stamp(9)
            spin_poll(vPL, vYF, S_WS, f"s{sFG}", first_loaded=True)
            stamp(10)
        gaps[1].append((chk, None))
    for gi in (2, 3):
        gaps[gi] += q.pop(0)
    wreg = (lambda d, ks=ks: ar(A_Y + 8 * ks + 4 * d, 4)) if ks < 8 else (lambda d, ks=ks: vr(vWB[ks & 1] + 4 * d, 4))
    for m, g in zip(p2_mfmas(A_DN, wreg, ks, ks == 0), gaps):
        e(m)
        for it in g: put(it)
assert not xq and not pre_
stamp(11)
sv = e.lines; e.lines = []
e("s_nop 5")
for i in range(1, 4):
    for qd in range(4):
        e(f"ds_write_b128 v{vRW+i-1}, {ar(A_DN+16*i+4*qd,4)} offset:{1024*qd}")
for r in range(16):
    e(f"v_accvgpr_read_b32 v{vGt+r}, a{A_DN+r}")
e("s_waitcnt lgkmcnt(0)\ns_barrier")
tmp = [56, 224, 240]
for i in range(3):
    for qd in range(4):
        if i < 2:
            e(f"ds_read_b128 {vr(tmp[i]+4*qd,4)}, v{vRR} offset:{4096*(i+1) + 1024*qd}")
        else:
            e(f"ds_read_b128 {vr(tmp[i]+4*qd,4)}, v{vRR+1} offset:{1024*qd}")
for i in range(3):
    e(f"s_waitcnt lgkmcnt({8-4*i})")
    for r in range(16):
        e(f"v_add_f32 v{vGt+r}, v{vGt+r}, v{tmp[i]+r}")
e(f"s_mov_b32 s{sT0}, {fbits(-LOG2E)}")
for r in range(16):
    e(f"v_mul_f32 v{40+r}, s{sT0}, v{vGt+r}")
for r in range(16):
    e(f"v_exp_f32 v{40+r}, v{40+r}")
for r in range(16):
    e(f"v_add_f32 v{40+r}, 1.0, v{40+r}")
for r in range(16):
    e(f"v_rcp_f32 v{40+r}, v{40+r}")
for r in range(16):
    e(f"v_mul_f32 v{vGt+r}, v{vGt+r}, v{40+r}")
st_ = [(x.strip(), None) for x in e.lines]; e.lines = sv
NPG = math.ceil(len(st_) / 62)
for ks in range(16):
    e.vm_wait(f"y{ks}")
    gaps = [[] for _ in range(4)]
    for gi in (1, 3):
        if q: gaps[gi] += q.pop(0)
    for gi in range(4):
        gaps[gi] += st_[:NPG]; st_ = st_[NPG:]
    for m, g in zip(p2_mfmas(A_Y, lambda d, ks=ks: ar(A_C + 8 * ks + 4 * d, 4), ks, ks == 0), gaps):
        e(m)
        for it in g: put(it)
assert not st_ and not q
stamp(12)
e("s_nop 11")
for i in range(1, 4):
    for qd in range(4):
        e(f"ds_write_b128 v{vRW2+i-1}, {ar(A_Y+16*i+4*qd,4)} offset:{1024*qd}")
for r in range(16):
    e(f"v_accvgpr_read_b32 v{40+r}, a{A_Y+r}")
for r in range(0, 16, 2):
    e(f"v_pk_add_f32 {vr(vZ+r,2)}, {vr(vZ+r,2)}, {vr(40+r,2)}")
e("s_waitcnt lgkmcnt(0)\ns_barrier")
stamp(15)
for i in range(3):
    for qd in range(4):
        e(f"ds_read_b128 {vr(96+16*i+4*qd,4)}, v{vYR} offset:{4096*i + 1024*qd}")
for i in range(3):
    e(f"s_waitcnt lgkmcnt({8-4*i})")
    for r in range(0, 16, 2):
        e(f"v_pk_add_f32 {vr(vZ+r,2)}, {vr(vZ+r,2)}, {vr(96+16*i+r,2)}")
for g in range(4):
    for r in (4 * g, 4 * g + 2):
        e(f"v_pk_fma_f32 {vr(vZ+r,2)}, {vr(vZ+r,2)}, {vr(vGt+r,2)}, {vr(vXFf+r,2)}")
    e.vm(f"buffer_store_dwordx4 {vr(vZ+4*g,4)}, v{vOA}, s[{S_M}:{S_M+3}], 0 offen offset:{32*g}{OUTF}", "out")
if OPT["stamp"]:
    stamp(16)
    e.vm_wait_all()
    stamp(13)
    stamp_flush()
if "leak" in OPT:
    e("s_waitcnt vmcnt(0)")
    stamp(13)
    e(f"""s_sub_u32 s3, s3, s100
s_lshl_b32 s3, s3, 1
s_memrealtime s[{sST}:{sST+1}]
s_waitcnt lgkmcnt(0)
s_add_u32 s3, s3, s{sST}
Lleak:
s_memrealtime s[{sST}:{sST+1}]
s_waitcnt lgkmcnt(0)
s_cmp_lt_u32 s{sST}, s3
s_cbranch_scc1 Lleak""")
e("L_end:\ns_endpgm")
e(f""".section .rodata,"a"
.p2align 6
.amdhsa_kernel {KN}
  .amdhsa_next_free_vgpr 512
  .amdhsa_next_free_sgpr {102 if 'leak' in OPT else 100}
  .amdhsa_accum_offset 256
  .amdhsa_group_segment_fixed_size 0
  .amdhsa_kernarg_size 128
  .amdhsa_user_sgpr_count 2
  .amdhsa_user_sgpr_kernarg_segment_ptr 1
  .amdhsa_system_sgpr_workgroup_id_x 1
  .amdhsa_float_denorm_mode_32 3
.end_amdhsa_kernel""")
txt = e.text()
probs = check_hazards(txt)
for p in probs:
    sys.stderr.write(p + "\n")
sys.stderr.write(f"{len(probs)} hazard findings, {len(txt)} bytes\n")
open(sys.argv[1], "w").write(txt)
```

```python
import sys, math, struct
from asmlib import *

NAME = "recurrent_scan__ssm_conv_s5__glu_gated_geglu__prompt"
KN = NAME + "_kernel"
OPT = dict(stamp=False, rot=4, p2map=2, bt=1, btks=6, crate=3, rate0=4, ks0=8, rate=3, pre1=6,
           nepi=20, f0=5, f1=90, npre=4, ns1=12, ns2=14, ns5=2, ns3=99, defer=0, lead=6, outf=1, xt=0, bx=0, bxks=15, finpre=1, dpos=10, eg=0, es=0, sfin=0, pf=0, pfk2=1, pfk3=8, dlate=1, ybal=1, cpost=0, sks=19, btk2=8)
for a_ in sys.argv[2:]:
    k_, _, v_ = a_.partition("=")
    OPT[k_] = (int(v_) if v_ else True)

WS_HH, WS_H, WS_STAT, WS_R, WS_NUL, WS_AGG, WS_FLAG, WS_STAMP, WS_SIZE = (
    0, 0x600000, 0xA00000, 0xA10000, 0xA18000, 0xA20000, 0xA40000, 0xA80000, 0xB00000)
SLOT = 49152
L_MISC = 3 * SLOT
L_XS = L_MISC
L_XR = L_MISC + 1024
LDS_BYTES = 163840
SPIN = 200000
OOB = 0x7f000000
LOG2E = 1.4426950408889634
def fbits(x): return "0x%08x" % struct.unpack("<I", struct.pack("<f", x))[0]

S_X, S_W, S_WS, S_CRE, S_CIM, S_WD, S_M = 4, 8, 12, 16, 20, 24, 28
P_X, P_LRE, P_LIM, P_BRE, P_BIM, P_CRE, P_CIM, P_LDT = 32, 34, 36, 38, 40, 42, 44, 46
P_D, P_BX, P_WG, P_WU, P_WD, P_OUT, P_DBG, P_WSP = 48, 50, 52, 54, 56, 58, 60, 62
sWAVE, sRB, sCT, sXB, sQ, sC0, sTG, sNG = 64, 65, 66, 67, 68, 69, 70, 71
sXOFF, sWOFF, sWSTEP, sMX, sMW, sPB0, sPB1 = 72, 73, 74, 75, 76, 77, 78
sT0, sT1, sT2, sT3, sCNT, sMASK = 79, 80, 81, 82, 83, 84
sCOFF, sDOFF, sAOFF, sU0 = 85, 87, 88, 89
sST, sT4, sT5, sPC = 90, 92, 93, 94
sO1, sO2, sO3, sPB3, sU1, sTS, sTO = 96, 97, 98, 99, 96, 97, 98
sAC, sYA, sFG, sFL, sDA = sXOFF, sWOFF, sWSTEP, sMX, sMW

vLANE = 1
vCV, vDV = 16, 20
vXV, vWV = 24, 32
vXA0, vXA2, vWA0, vWA2 = 36, 40, 44, 48
vS0, vS1, vST0, vST1 = 52, 53, 54, 55
vREC = 56
vSF = 72
vXF = [80, 104]
vWF = [96, 120, 72]
vACC = 128
def acc(b, c): return vACC + 16 * (2 * b + c)
vCA, vDA, vDA2 = 24, 28, 30
vA0, vA1, vA0x, vA1x, vOA, vDF, vYF, vFA, vPL, vFX, vFD, vFS = range(84, 96)
vWB = [40, 48]
vAB, NB = 96, 10
vZ, vXFf, vGt = 176, 192, 208
vXQ, vDQ, vRC = 224, 232, 240
A_C, A_DN, A_Y = 0, 128, 192

e = Emit()
OUTF = {0: '', 1: ' sc1', 2: ' nt', 3: ' sc0 sc1'}[OPT['outf']]

def I(txt):
    return [(x.strip(), None) for x in txt.strip("\n").split("\n") if x.strip()]
def put(item):
    s, tag = item
    if callable(s): s()
    elif tag: e.vm(s, tag)
    else: e(s)
def puts(items):
    for it in items: put(it)
def capture(f):
    sv = e.lines; e.lines = []
    f()
    out = [(x.strip(), None) for x in e.lines]; e.lines = sv
    return out
def srd_l(d, base, nbytes):
    return I(f"s_mov_b32 s{d}, s{base}\ns_mov_b32 s{d+1}, s{base+1}\ns_mov_b32 s{d+2}, {nbytes}\ns_mov_b32 s{d+3}, 0x00020000")
def srd(d, base, nbytes): puts(srd_l(d, base, nbytes))
def waitv(tags): return (lambda: e.vm_wait(tags), None)
LGKM0 = ("s_waitcnt lgkmcnt(0)", None)
def flat(groups): return [it for g in groups for it in g]
def atoms(items, n=1): return [items[i:i+n] for i in range(0, len(items), n)]
def sprinkle(stream, side, start=0, end=None):
    end = len(stream) if end is None else end
    out = []; k = 0; n = len(side)
    for i, it in enumerate(stream):
        out.append(it)
        if start <= i < end:
            upto = math.ceil(n * (i - start + 1) / (end - start))
            while k < upto:
                out += side[k]; k += 1
    while k < n:
        out += side[k]; k += 1
    return out
def interleave(ms, fill):
    n = len(ms); k = 0
    for i, m in enumerate(ms):
        e(m)
        upto = math.ceil(len(fill) * (i + 1) / n)
        while k < upto:
            put(fill[k]); k += 1
def groups_of(lst):
    groups = []; cur = []
    for it in lst:
        cur.append(it)
        if it[1]:
            groups.append(cur); cur = []
    if cur: groups[-1] += cur
    return groups
def take(seq, n):
    k = 0
    for i, g in enumerate(seq):
        if k == n: return seq[:i], seq[i:]
        if any(it[1] for it in g): k += 1
    return seq, []

def stamp(i):
    if "leak" in OPT:
        if i == 0: e("s_memrealtime s[100:101]\ns_waitcnt lgkmcnt(0)\ns_mov_b32 s3, s100")
        if i == OPT["leak"]: e(f"s_memrealtime s[{sST}:{sST+1}]\ns_waitcnt lgkmcnt(0)\ns_mov_b32 s3, s{sST}")
    if OPT["stamp"]:
        e(f"s_memrealtime s[{sST}:{sST+1}]\ns_waitcnt lgkmcnt(0)\nv_writelane_b32 v15, s{sST}, {i}")
        if OPT.get("clk"):
            e(f"s_memtime s[{sST}:{sST+1}]\ns_waitcnt lgkmcnt(0)\nv_writelane_b32 v15, s{sST}, {i+32}")

def spin_poll(vdst, vaddr, srd_, soff, first_loaded=False):
    L = e.label("poll"); D = e.label("pdone"); C = e.label("pchk")
    e(f"s_mov_b32 s{sCNT}, {SPIN}")
    if first_loaded: e(f"s_branch {C}")
    e(f"""{L}:
buffer_load_dword v{vdst}, v{vaddr}, s[{srd_}:{srd_+3}], {soff} offen sc1
s_waitcnt vmcnt(0)
{C}:
v_cmp_ne_u32 vcc, 0, v{vdst}
s_nop 1
s_cmp_eq_u64 vcc, -1
s_cbranch_scc1 {D}
s_sub_u32 s{sCNT}, s{sCNT}, 1
s_cbranch_scc1 {D}
s_sleep 1
s_branch {L}
{D}:""")
    if not first_loaded: e.vmq = []

def cfma_l(dst, x, y, z, tmp):
    return [(f"v_pk_fma_f32 {vr(tmp,2)}, {vr(x,2)}, {vr(y,2)}, {vr(z,2)} op_sel:[1,1,0] op_sel_hi:[0,1,1] neg_lo:[0,1,0]", None),
            (f"v_pk_fma_f32 {vr(dst,2)}, {vr(x,2)}, {vr(y,2)}, {vr(tmp,2)} op_sel:[0,0,0] op_sel_hi:[1,0,1]", None)]
def cfma(*a): puts(cfma_l(*a))
def cmul(dst, x, y, tmp):
    e(f"v_pk_mul_f32 {vr(tmp,2)}, {vr(x,2)}, {vr(y,2)} op_sel:[1,1] op_sel_hi:[0,1] neg_lo:[0,1]")
    e(f"v_pk_fma_f32 {vr(dst,2)}, {vr(x,2)}, {vr(y,2)}, {vr(tmp,2)} op_sel:[0,0,0] op_sel_hi:[1,0,1]")

hdr = open("cdna_kernels/" + NAME + ".s.ref").read().split("; Override launch")[0]
e.lines.append(hdr.rstrip("\n"))
e(f"; @launch grid=(256,1,1) block=(256,1,1) lds={LDS_BYTES}")
e(f""".amdgcn_target "amdgcn-amd-amdhsa--gfx950"
.text
.globl {KN}
.p2align 8
.type {KN},@function
{KN}:
s_cmp_ge_u32 s2, 256
s_cbranch_scc1 L_end
s_load_dwordx16 s[32:47], s[0:1], 0
s_load_dwordx16 s[48:63], s[0:1], 64
s_getpc_b64 s[{sPC}:{sPC+1}]
Lpc0:
v_lshrrev_b32 v2, 6, v0
v_and_b32 v{vLANE}, 63, v0
s_lshr_b32 s{sT0}, s2, 3
v_readfirstlane_b32 s{sWAVE}, v2""")
if OPT["stamp"]: e("v_mov_b32 v15, 0")
stamp(0)
e(f"""s_and_b32 s{sRB}, s2, 1
s_lshl_b32 s{sRB}, s{sRB}, 2
s_and_b32 s{sT1}, s{sT0}, 3
s_add_u32 s{sRB}, s{sRB}, s{sT1}
s_lshr_b32 s{sT0}, s{sT0}, 2
s_bfe_u32 s{sT1}, s2, 0x20001
v_lshrrev_b32 v6, 3, v{vLANE}
v_and_b32 v7, 7, v{vLANE}
v_lshrrev_b32 v8, 4, v{vLANE}
v_xor_b32 v9, v7, v8
v_lshlrev_b32 v9, 4, v9
v_xor_b32 v10, 64, v9
s_and_b32 s{sTG}, s{sWAVE}, 1
s_lshr_b32 s{sNG}, s{sWAVE}, 1
s_lshl_b32 s{sMX}, s{sWAVE}, 13
s_lshl_b32 s{sMW}, s{sWAVE}, 12
s_add_u32 s{sMW}, s{sMW}, 32768
s_lshl_b32 s{sT2}, s{sRB}, 8
s_lshl_b32 s{sT3}, s{sWAVE}, 6
s_add_u32 s{sT2}, s{sT2}, s{sT3}
v_add_u32 v11, s{sT2}, v6
v_lshlrev_b32 v11, 10, v11
v_add_u32 v12, v11, v9
v_add_u32 v13, v11, v10""")
for i in range(8):
    e(f"v_add_u32 v{vXV+i}, {8192*i - 1024*(i&3)}, v{12 + (i&1)}")
e(f"""v_and_b32 v11, 1, v8
v_lshlrev_b32 v11, 2, v11
v_xor_b32 v11, v11, v7
v_lshlrev_b32 v14, 4, v11""")
e({0: f"s_mov_b32 s{sXOFF}, 0",
   1: f"s_lshl_b32 s{sXOFF}, s{sRB}, 1\ns_add_u32 s{sXOFF}, s{sXOFF}, s{sT0}\ns_and_b32 s{sXOFF}, s{sXOFF}, 3\ns_lshl_b32 s{sXOFF}, s{sXOFF}, 8",
   2: f"s_lshl_b32 s{sXOFF}, s{sRB}, 1\ns_add_u32 s{sXOFF}, s{sXOFF}, s{sT0}\ns_and_b32 s{sXOFF}, s{sXOFF}, 7\ns_lshl_b32 s{sXOFF}, s{sXOFF}, 7",
   4: f"s_add_u32 s{sXOFF}, s{sRB}, s{sT0}\ns_and_b32 s{sXOFF}, s{sXOFF}, 3\ns_lshl_b32 s{sXOFF}, s{sXOFF}, 8",
   3: f"s_xor_b32 s{sXOFF}, s{sRB}, s{sT0}\ns_and_b32 s{sXOFF}, s{sXOFF}, 1\ns_lshl_b32 s{sXOFF}, s{sXOFF}, 9"}[OPT["rot"]])
e(f"""s_mov_b32 s{S_X+2}, 2097152
s_mov_b32 s{S_X+3}, 0x00020000
s_mov_b32 s{S_W+3}, 0x00020000
s_cmp_lt_u32 s{sT0}, 2
s_cbranch_scc1 L_ssm
s_mul_i32 s{sT1}, s{sT1}, 6
s_add_u32 s{sCT}, s{sT1}, s{sT0}
s_sub_u32 s{sCT}, s{sCT}, 2
s_cmp_ge_u32 s{sCT}, 22
s_cbranch_scc1 L_stats""")

def late_setup():
    e(f"s_mov_b32 s{sMASK}, 0xffff0000")
    srd(S_WS, P_WSP, WS_SIZE); srd(S_CRE, P_CRE, 524288); srd(S_CIM, P_CIM, 524288); srd(S_WD, P_WD, 1376 * 1024)
    if OPT["p2map"] == 1:
        e(f"""s_lshr_b32 s{sT2}, s2, 3
s_bfe_u32 s{sQ}, s{sT2}, 0x20002
s_and_b32 s{sC0}, s{sT2}, 3
s_and_b32 s{sT3}, s2, 1
s_lshl_b32 s{sT3}, s{sT3}, 2
s_add_u32 s{sC0}, s{sC0}, s{sT3}
s_and_b32 s{sXB}, s2, 6
s_lshr_b32 s{sT2}, s{sT2}, 4
s_add_u32 s{sXB}, s{sXB}, s{sT2}""")
    elif OPT["p2map"] == 2:
        e(f"""s_bfe_u32 s{sQ}, s2, 0x20003
s_lshr_b32 s{sC0}, s2, 6
s_and_b32 s{sT3}, s2, 1
s_lshl_b32 s{sT3}, s{sT3}, 2
s_add_u32 s{sC0}, s{sC0}, s{sT3}
s_and_b32 s{sXB}, s2, 6
s_bfe_u32 s{sT2}, s2, 0x10005
s_add_u32 s{sXB}, s{sXB}, s{sT2}""")
    elif OPT["p2map"] == 4:
        e(f"""s_bfe_u32 s{sQ}, s2, 0x20003
s_lshr_b32 s{sC0}, s2, 6
s_add_u32 s{sC0}, s{sC0}, s{sQ}
s_and_b32 s{sC0}, s{sC0}, 3
s_and_b32 s{sT3}, s2, 1
s_lshl_b32 s{sT3}, s{sT3}, 2
s_add_u32 s{sC0}, s{sC0}, s{sT3}
s_and_b32 s{sXB}, s2, 6
s_bfe_u32 s{sT2}, s2, 0x10005
s_add_u32 s{sXB}, s{sXB}, s{sT2}""")
    elif OPT["p2map"] == 3:
        e(f"s_and_b32 s{sXB}, s2, 7\ns_bfe_u32 s{sQ}, s2, 0x20003\ns_lshr_b32 s{sC0}, s2, 5")
    else:
        e(f"s_and_b32 s{sXB}, s2, 7\ns_lshr_b32 s{sQ}, s2, 6\ns_bfe_u32 s{sC0}, s2, 0x30003")
    e(f"""s_mul_i32 s{sPB1}, s{sWAVE}, 12288
s_add_u32 s{sPB0}, s{sPB1}, {2*SLOT}
s_lshl_b32 s{sCOFF}, s{sWAVE}, 8
s_lshl_b32 s{sT2}, s{sTG}, 15
s_add_u32 s{sCOFF+1}, s{sCOFF}, 32768
s_sub_u32 s{sCOFF+1}, s{sCOFF+1}, s{sT2}
s_add_u32 s{sCOFF}, s{sCOFF}, s{sT2}
s_mul_i32 s{sDOFF}, s{sWAVE}, {352*1024}
s_lshl_b32 s{sT2}, s{sC0}, 6
v_add_u32 v11, s{sT2}, v6
v_lshlrev_b32 v11, 10, v11
v_add_u32 v12, v11, v9
v_add_u32 v13, v11, v10""")
    for i in range(4):
        e(f"v_add_u32 v{vCV+i}, {7168*i}, v{12 + (i&1)}")
    e(f"s_lshl_b32 s{sT2}, s{sC0}, 7\nv_lshl_add_u32 v11, v6, 10, v14\nv_add_u32 v11, s{sT2}, v11")
    for i in range(4):
        e(f"v_add_u32 v{vDV+i}, {7168*i}, v11")

def code_touch():
    e(f"""s_bfe_u32 s{sT2}, s2, 0x30003
s_lshl_b32 s{sT2}, s{sT2}, 2
s_add_u32 s{sT2}, s{sT2}, s{sWAVE}
s_mul_i32 s{sT2}, s{sT2}, ((L_end-Lpc0)/128+32)/32
v_min_u32 v11, ((L_end-Lpc0)/128+32)/32-1, v{vLANE}
v_add_u32 v11, s{sT2}, v11
v_lshlrev_b32 v11, 7, v11
v_min_u32 v11, L_end-Lpc0, v11
s_mov_b64 exec, 0xffff""")
    e.vm(f"global_load_dword v0, v11, s[{sPC}:{sPC+1}]", "code")
    e("s_mov_b64 exec, -1")

def b_touch():
    def f0():
        e(f"""s_lshl_b32 s{sT2}, s2, 2
s_add_u32 s{sT2}, s{sT2}, s{sWAVE}
s_mul_i32 s{sT3}, s{sT2}, {11*128}
s_lshl_b32 s{sT2}, s{sT2}, 9
v_lshlrev_b32 v2, 7, v{vLANE}""")
    def f1():
        e("s_mov_b64 exec, 0x7ff")
        e.vm(f"buffer_load_dword v0, v2, s[{S_WD}:{S_WD+3}], s{sT3} offen", "bt")
        e("s_mov_b64 exec, 15")
        e.vm(f"buffer_load_dword v0, v2, s[{S_CRE}:{S_CRE+3}], s{sT2} offen", "bt")
        e.vm(f"buffer_load_dword v0, v2, s[{S_CIM}:{S_CIM+3}], s{sT2} offen", "bt")
        e("s_mov_b64 exec, -1")
    def f1a():
        e("s_mov_b64 exec, 15")
        e.vm(f"buffer_load_dword v0, v2, s[{S_CRE}:{S_CRE+3}], s{sT2} offen", "bt")
        e.vm(f"buffer_load_dword v0, v2, s[{S_CIM}:{S_CIM+3}], s{sT2} offen", "bt")
        e("s_mov_b64 exec, -1")
    def f1b():
        e("s_mov_b64 exec, 0x7ff")
        e.vm(f"buffer_load_dword v0, v2, s[{S_WD}:{S_WD+3}], s{sT3} offen", "bt")
        e("s_mov_b64 exec, -1")
    if not OPT["bt"]: return []
    if OPT["btk2"]: return [f0, f1a] + [lambda: None] * (OPT["btk2"] - 1) + [f1b]
    return [f0, f1]

def x_touch():
    e(f"""s_lshl_b32 s{sT2}, s2, 2
s_add_u32 s{sT2}, s{sT2}, s{sWAVE}
v_lshlrev_b32 v2, 7, v{vLANE}
s_lshl_b32 s{sT3}, s{sT2}, 11
s_mov_b64 exec, 0xffff""")
    e.vm(f"buffer_load_dword v0, v2, s[{S_X}:{S_X+3}], s{sT3} offen", "xt")
    e(f"s_mul_i32 s{sT3}, s{sT2}, {11*128}\ns_lshl_b32 s{sT2}, s{sT2}, 9\ns_mov_b64 exec, 0x7ff")
    for p in (P_WG, P_WU):
        srd(S_M, p, 512 * 2752)
        e.vm(f"buffer_load_dword v0, v2, s[{S_M}:{S_M+3}], s{sT3} offen", "xt")
    e("s_mov_b64 exec, 15")
    for p in (P_BRE, P_BIM):
        srd(S_M, p, 524288)
        e.vm(f"buffer_load_dword v0, v2, s[{S_M}:{S_M+3}], s{sT2} offen", "xt")
    e("s_mov_b64 exec, -1")

vPF = 5
def pf_setup(role):
    lo, hi = ((P_BRE, P_BIM) if role == "ssm" else (P_WG, P_WU))
    e(f"""s_cmp_eq_u32 s{sWAVE}, 2
s_cselect_b32 s{S_M}, s{lo}, s{hi}
s_cselect_b32 s{S_M+1}, s{lo+1}, s{hi+1}
s_mov_b32 s{S_M+3}, 0x00020000
s_and_b32 s{sT2}, s{sRB}, 3
s_lshl_b32 s{sT2}, s{sT2}, 4
v_and_b32 v3, 15, v{vLANE}
v_lshrrev_b32 v4, 5, v{vLANE}""")
    if role == "ssm":
        e(f"""s_lshl_b32 s{sT3}, s{sCT}, 6
s_add_u32 s{sT2}, s{sT2}, s{sT3}
v_add_u32 v{vPF}, s{sT2}, v3
v_lshlrev_b32 v{vPF}, 10, v{vPF}
v_lshl_add_u32 v{vPF}, v4, 7, v{vPF}
s_mov_b32 s{sTS}, 256""")
    else:
        e(f"""v_lshl_add_u32 v{vPF}, v4, 6, v3
v_add_u32 v{vPF}, s{sT2}, v{vPF}
v_mul_u32_u24 v{vPF}, 2752, v{vPF}
s_lshl_b32 s{sT2}, s{sCT}, 7
v_bfe_u32 v2, v{vLANE}, 4, 1
v_mul_u32_u24 v2, 124, v2
v_add3_u32 v{vPF}, v{vPF}, v2, s{sT2}
s_mov_b32 s{sTS}, {128*2752}""")
    e(f"""s_lshl_b32 s{sT2}, s{sRB}, 8
s_lshr_b32 s{sT3}, s2, 5
s_lshl_b32 s{sT3}, s{sT3}, 5
s_add_u32 s{sT2}, s{sT2}, s{sT3}
s_lshl_b32 s{sT3}, s{sWAVE}, 4
s_add_u32 s{sT2}, s{sT2}, s{sT3}
v_add_u32 v3, s{sT2}, v3
v_lshlrev_b32 v3, 10, v3
v_lshl_add_u32 v3, v4, 7, v3
s_cmp_lt_u32 s{sWAVE}, 2
s_cselect_b64 vcc, -1, 0
s_cselect_b32 s{S_M}, s{P_X}, s{S_M}
s_cselect_b32 s{S_M+1}, s{P_X+1}, s{S_M+1}
s_cselect_b32 s{S_M+2}, 2097152, s{S_W+2}
s_cselect_b32 s{sTS}, 256, s{sTS}
s_mov_b32 s{sTO}, 0
v_cndmask_b32 v{vPF}, v{vPF}, v3, vcc""")
def pf_touch():
    e.vm(f"buffer_load_dword v0, v{vPF}, s[{S_M}:{S_M+3}], s{sTO} offen", "pf")
    e(f"s_add_u32 s{sTO}, s{sTO}, s{sTS}")

def bx_touch():
    def f0():
        e(f"""s_and_b32 s{sT2}, s{sXB}, 1
s_lshl_b32 s{sT2}, s{sT2}, 2
s_add_u32 s{sT2}, s{sT2}, s{sQ}
s_bitcmp1_b32 s{sT2}, 1
s_cselect_b32 s{S_M}, s{P_CIM}, s{P_CRE}""")
    def f1():
        e(f"""s_bitcmp1_b32 s{sT2}, 1
s_cselect_b32 s{S_M+1}, s{P_CIM+1}, s{P_CRE+1}
s_mov_b32 s{S_M+2}, 524288
s_mov_b32 s{S_M+3}, 0x00020000
v_lshlrev_b32 v2, 10, v{vLANE}""")
    def f2():
        e(f"""s_lshl_b32 s{sT3}, s{sC0}, 1
s_and_b32 s{sT0}, s{sT2}, 1
s_add_u32 s{sT3}, s{sT3}, s{sT0}
s_lshl_b32 s{sT3}, s{sT3}, 15
s_lshl_b32 s{sT0}, s{sWAVE}, 1""")
    def f3():
        e(f"""s_lshr_b32 s{sT1}, s{sT2}, 2
s_add_u32 s{sT0}, s{sT0}, s{sT1}
s_lshl_b32 s{sT0}, s{sT0}, 7
s_add_u32 s{sT3}, s{sT3}, s{sT0}
s_mov_b32 exec_hi, 0""")
        e.vm(f"buffer_load_dword v0, v2, s[{S_M}:{S_M+3}], s{sT3} offen", "bx")
        e("s_mov_b64 exec, -1")
    def f4():
        e(f"""s_mul_i32 s{sT3}, s{sT2}, {44*1024}
s_add_u32 s{sT3}, s{sT3}, s{sDOFF}
s_lshl_b32 s{sT0}, s{sC0}, 7
s_add_u32 s{sT3}, s{sT3}, s{sT0}""")
    def f5():
        e("s_mov_b32 exec_hi, 0xfff")
        e.vm(f"buffer_load_dword v0, v2, s[{S_WD}:{S_WD+3}], s{sT3} offen", "bx")
        e("s_mov_b64 exec, -1")
    return [f0, f1, f2, f3, f4, f5] if OPT["bx"] else []

def dma_stage(stage):
    sb = (stage % 3) * SLOT
    out = [(f"s_add_u32 m0, s{sMW}, {sb}", None), (f"s_mul_i32 s{sWOFF}, s{sXOFF}, s{sWSTEP}", None)]
    for i in range(4):
        out.append((f"buffer_load_dwordx4 v{vWV+i}, s[{S_W}:{S_W+3}], s{sWOFF} offen offset:{1024*i}{' nt' if stage < OPT.get('wnt', 0) else ''} lds", f"st{stage}"))
    for i in range(8):
        if i % 4 == 0:
            out.append((f"s_add_u32 m0, s{sMX}, {sb + 4096*(i>>2)}", None))
        out.append((f"buffer_load_dwordx4 v{vXV+i}, s[{S_X}:{S_X+3}], s{sXOFF} offen offset:{1024*(i&3)}{' nt' if stage < OPT.get('xnt', 0) else ''} lds", f"st{stage}"))
    out += I(f"s_add_u32 s{sXOFF}, s{sXOFF}, 128\ns_and_b32 s{sXOFF}, s{sXOFF}, 0x3ff")
    return groups_of(out)
def padded(g):
    return [g[0], ("s_nop 0", None)] + g[1:] if (g[0][0].startswith("s_add_u32 m0") and g[1][1]) else g

class Plan: pass
def set_plan(early):
    Plan.early = early
    if early:
        Plan.C = {0: (3, 0), 1: (3, 0), 2: (3, 0), 3: (3, 0), 4: (0, 0), 5: (0, 1), 6: (0, 2), 7: (1, 0)}
        Plan.D = dict(DFIN); Plan.D[0] = (1, 1)
    else:
        Plan.C = {u: (u // 3, u % 3) for u in range(8)}
        Plan.D = dict(DFIN); Plan.D[0] = (2, 2)
DFIN = {1: (0, 0), 2: (0, 1), 3: (0, 2), 4: (1, 0), 5: (1, 1), 6: (1, 2), 7: (2, 0), 8: (2, 1), 9: (2, 2), 10: (0, 0)}
set_plan(0)
vCM = [57, 58, 59, 61]
def pos_m0(pos):
    p, k = pos
    if p == 3: return (sPB3, 0)
    return (sPB0, 4096 * k) if p == 0 else (sPB1, 4096 * k + (SLOT if p == 2 else 0))
def cgroups(us):
    out = []
    for u in us:
        ph, ci, ds = u >> 2, (u >> 1) & 1, u & 1
        sb, off = pos_m0(Plan.C[u]); s = S_CIM if ci else S_CRE
        L = I(f"s_add_u32 m0, s{sb}, {off}\ns_add_u32 s{sU0}, s{sCOFF+ds}, {128*ph}")
        L += [(f"buffer_load_dwordx4 v{vCV+i}, s[{s}:{s+3}], s{sU0} offen offset:{1024*i} lds", f"C{u}") for i in range(4)]
        out += groups_of(L)
    return out
def dgroups(us):
    out = []
    for u in us:
        sb, off = pos_m0(Plan.D[u])
        L = I(f"s_add_u32 m0, s{sb}, {off}\ns_add_u32 s{sU0}, s{sDOFF}, {32768*u}")
        L += [(f"buffer_load_dwordx4 v{vDV+i}, s[{S_WD}:{S_WD+3}], s{sU0} offen offset:{1024*i} lds", f"D{u}") for i in range(4)]
        out += groups_of(L)
    return out
def read_cunit(u):
    ph, ci, ds = u >> 2, (u >> 1) & 1, u & 1
    p, k = Plan.C[u]
    off = 4096 * k + (SLOT if p == 2 else 0)
    return [(f"ds_read_b128 {ar(A_C + 8*(4*(2*ph + (jp>>1)) + 2*ci + (jp&1)) + 4*ds, 4)}, v{vCM[jp] if p == 3 else vCA+jp} offset:{off}", None) for jp in range(4)]
def dfrag_reads(u, jj, ds, dst):
    p, k = Plan.D[u]
    base = vDA2 if p == 0 else vDA
    off = 4096 * k + (SLOT if p == 2 else 0) + 2048 * jj
    return [(f"ds_read_b64_tr_b16 {dst(2*ee)}, v{base+ds} offset:{off + 1024*ee}", None) for ee in range(2)]
def read_dunit(u):
    out = []
    for jj in range(2):
        for ds in range(2):
            r0 = A_Y + 8 * (2 * u + jj) + 4 * ds
            out += dfrag_reads(u, jj, ds, lambda o: ar(r0 + o, 2))
    return out
def b_read_addrs(t):
    L = f"""v_and_b32 v{t}, 31, v{vLANE}
v_lshrrev_b32 v{t+1}, 5, v{vLANE}
v_bfe_u32 v{t+2}, v{vLANE}, 1, 3
v_xor_b32 v{t+2}, v{t+2}, v{t+1}
v_lshlrev_b32 v{t}, 7, v{t}
v_add_u32 v{t}, s{sPB0}, v{t}
"""
    for j in range(4):
        L += f"v_xor_b32 v{t+3}, {2*j}, v{t+2}\nv_lshl_add_u32 v{vCA+j}, v{t+3}, 4, v{t}\n"
    L += f"""v_bfe_u32 v{t}, v{vLANE}, 2, 2
v_lshl_add_u32 v{t}, v{t+1}, 2, v{t}
v_lshlrev_b32 v{t}, 7, v{t}
v_add_u32 v{t}, s{sPB1}, v{t}
v_bfe_u32 v{t+2}, v{vLANE}, 4, 1
v_lshl_add_u32 v{t}, v{t+2}, 5, v{t}
v_and_b32 v{t+2}, 3, v{vLANE}
v_lshl_add_u32 v{t}, v{t+2}, 3, v{t}
v_bfe_u32 v{t+2}, v{vLANE}, 3, 1
v_xor_b32 v{t+2}, s{sTG}, v{t+2}
v_lshl_add_u32 v{vDA}, v{t+2}, 6, v{t}
v_xor_b32 v{vDA+1}, 64, v{vDA}
v_add_u32 v{vDA2}, {2*SLOT}, v{vDA}
v_add_u32 v{vDA2+1}, {2*SLOT}, v{vDA+1}"""
    return I(L)
REBASE = I("\n".join(f"v_subrev_u32 v{vCA+j}, {2*SLOT}, v{vCA+j}" for j in range(4)))
def R0():
    us = (4, 5, 6) if Plan.early else (0, 1, 2)
    return [[waitv(f"C{us[2]}")]] + atoms(flat([read_cunit(u) for u in us]), 2) + [REBASE]
def R1():
    if Plan.early: return [[waitv("D0")]] + atoms(read_cunit(7) + read_dunit(0), 2)
    return [[waitv("C5")]] + atoms(read_cunit(3) + read_cunit(4) + read_cunit(5), 2)
def R2(): return [[waitv("D0")]] + atoms(read_cunit(6) + read_cunit(7) + read_dunit(0), 2)
def R3(): return [[waitv("D3")]] + atoms(read_dunit(1) + read_dunit(2) + read_dunit(3), 2)
def zipr(dma, rd, skip=1):
    out = list(dma[:skip]); n = len(dma) - skip; k = 0
    for i, g in enumerate(dma[skip:]):
        upto = math.ceil(len(rd) * (i + 1) / n)
        out += rd[k:upto]; k = upto
        out.append(g)
    return out
def bseq(left):
    if Plan.early:
        c_ = [g for g in left if any(it[1] in ("C7", "D0", "D6") for it in g)]
        d79 = left[len(c_):]
        return (c_ + [[LGKM0]] + zipr(dgroups([1, 2, 3]), R1(), 2) + [[LGKM0]] + dgroups([4, 5]) + zipr(d79, R3(), 4) + [[LGKM0]] + dgroups([10]))
    ST = (lambda i: [[(lambda: stamp(i), None)]]) if OPT.get("bst") else (lambda i: [])
    return (left + ST(17) + [[LGKM0]] + zipr(dgroups([1, 2, 3]), R1(), 2)[:] + ST(18) + [[LGKM0]] + zipr(dgroups([4, 5, 6]), R2()) + ST(19)
            + [[LGKM0]] + zipr(dgroups([7, 8, 9]), R3()) + ST(20) + [[LGKM0]] + dgroups([10]) + ST(21))

def x_lds_addrs(tau0_code):
    e(tau0_code)
    e(f"""v_lshrrev_b32 v3, 5, v{vLANE}
v_bfe_u32 v4, v2, 1, 3
v_xor_b32 v4, v4, v3
s_lshl_b32 s{sT2}, s{sTG}, 14
v_lshlrev_b32 v2, 7, v2
v_add_u32 v2, s{sT2}, v2
s_lshl_b32 s{sT2}, s{sTG}, 1
v_xor_b32 v4, s{sT2}, v4""")
    for j in range(4):
        e(f"v_xor_b32 v5, {2*j}, v4\nv_lshl_add_u32 v{vXA0+j}, v5, 4, v2\nv_add_u32 v{vXA2+j}, {2*SLOT}, v{vXA0+j}")
def w_reads(role, ks, W):
    stage, j = ks // 4, ks % 4
    slot = stage % 3; so = 0 if slot == 2 else slot * SLOT; wa = vWA2 if slot == 2 else vWA0
    if role == "ssm":
        return [[f"ds_read_b128 {vr(W+4*c, 4)}, v{wa+j} offset:{so + 8192*c}"] for c in range(2)]
    return [[f"ds_read_b64_tr_b16 {vr(W+4*c+2*ee, 2)}, v{wa+(j&1)} offset:{so + 8192*c + 2048*j + 512*ee}" for ee in range(2)] for c in range(2)]
def frag_reads(role, ks):
    stage, j = ks // 4, ks % 4
    slot = stage % 3; so = 0 if slot == 2 else slot * SLOT; xa = vXA2 if slot == 2 else vXA0
    wr = w_reads(role, ks, vWF[ks % 3])
    xr = [f"ds_read_b128 {vr(vXF[ks&1]+4*b, 4)}, v{xa+j} offset:{so + 2048*b}" for b in range(4)]
    return wr[0] + [xr[0]] + wr[1] + xr[1:]
def s_ops(W, c):
    out = []
    for d in range(4):
        w = W + 4 * c + d; s = vS0 + c
        out += [f"v_lshlrev_b32 v{vST0}, 16, v{w}", f"v_and_b32 v{vST1}, s{sMASK}, v{w}",
                f"v_add_f32 v{s}, v{s}, v{vST0}", f"v_add_f32 v{s}, v{s}, v{vST1}"]
    return out
def mfmas(role, ks):
    out = []
    for b in range(4):
        for c in range(2):
            A = vr(vWF[ks % 3] + 4 * c, 4); B = vr(vXF[ks & 1] + 4 * b, 4)
            if role == "ssm": A, B = B, A
            D = vr(acc(b, c), 16)
            out.append(f"v_mfma_f32_32x32x16_bf16 {D}, {A}, {B}, {'0' if ks == 0 else D}")
    return out
def rank1(role, SF):
    out = []
    for b in range(4):
        for c in range(2):
            A = vr(SF + 4 * c, 4); B = vr(vREC + 4 * b, 4)
            if role == "ssm": A, B = B, A
            D = vr(acc(b, c), 16)
            out.append(f"v_mfma_f32_32x32x16_bf16 {D}, {A}, {B}, {D}")
    return out

def main_loop(role, pre, stats_load, stats_fix, early):
    set_plan(early)
    PF = OPT["pf"]
    if PF:
        pf_setup(role)
        if PF in (1, 2): pf_touch()
        else: e(f"s_mov_b32 s{sTO}, s{sTS}")
        if PF == 1: pf_touch()
    for g in dma_stage(0): puts(padded(g))
    if PF in (2, 3): pf_touch()
    if PF: e(f"v_mov_b32 v{vREC+7}, v{vPF}")
    if OPT["xt"]: x_touch()
    late_setup()
    code_touch()
    pre()
    e(f"v_mov_b32 v{vS0}, 0\nv_mov_b32 v{vS1}, 0")
    q = [(0, g) for g in dma_stage(1)]
    for _ in range(OPT["pre1"]): puts(padded(q.pop(0)[1]))
    q += [(0, g) for g in dma_stage(2)]
    for st in range(3, 8):
        q += [(4 * (st - 3) + 3, g) for g in dma_stage(st)]
    eq = {}
    if early:
        q += [(23, g) for g in cgroups([4, 5, 6])] + [(27, g) for g in cgroups([7]) + dgroups([0, 6])] + [(31, g) for g in dgroups([7, 8, 9])]
        e(f"""s_lshl_b32 s{sPB3}, s{sWAVE}, 12
s_add_u32 s{sPB3}, s{sPB3}, {L_MISC}
v_and_b32 v2, 31, v{vLANE}
v_lshrrev_b32 v3, 5, v{vLANE}
v_bfe_u32 v4, v{vLANE}, 1, 3
v_xor_b32 v4, v4, v3
v_lshl_add_u32 v2, v2, 7, s{sPB3}""")
        for j in range(4):
            e(f"v_xor_b32 v3, {2*j}, v4\nv_lshl_add_u32 v{vCM[j]}, v3, 4, v2")
        for u in range(4):
            g = cgroups([u])
            eq[1 + 6 * u] = g[:2]; eq[2 + 6 * u] = g[2:]
    else:
        q += [(23, g) for g in cgroups([0, 1, 2])] + [(27, g) for g in cgroups([3, 4, 5])] + [(31, g) for g in cgroups([6, 7]) + dgroups([0])]
    e.vm_wait("st0")
    e("s_barrier")
    stamp(1)
    for s in frag_reads(role, 0): e(s)
    DG = [4, 5, 6, 7]
    bt = b_touch(); bx = bx_touch()
    vWE = vXV
    SF = vSF
    for ks in range(32):
        stage, j = ks // 4, ks % 4
        gaps = [[] for _ in range(8)]
        if j == 3:
            if OPT.get("fine"): gaps[0].append((lambda stage=stage: stamp(16 + 2 * stage), None))
            if stage < 7:
                assert not any(it[1] == f"st{stage+1}" for _, g in q for it in g)
                gaps[0].append(waitv([f"st{stage+1}", "dbg"]))
            gaps[0].append(("s_barrier", None))
            if OPT.get("fine"): gaps[0].append((lambda stage=stage: stamp(17 + 2 * stage), None))
        if ks < 31:
            for i, s in enumerate(frag_reads(role, ks + 1)): gaps[i // 2].append((s, None))
        if ks == OPT['sks']:
            def f():
                srd(S_M, P_DBG, 256)
                e(f"v_min_u32 v2, 15, v{vLANE}\nv_lshlrev_b32 v2, 2, v2")
                e.vm(f"buffer_load_dword v3, v2, s[{S_M}:{S_M+3}], 0 offen sc1", "dbg")
            gaps[3].append((f, None))
        if ks == OPT['sks'] + 4:
            gaps[3].append((lambda: (spin_poll(3, 2, S_M, "0", first_loaded=True), stats_load()), None))
        if ks == 27:
            gaps[4] += [(s, None) for s in flat(w_reads(role, 30, vWE))]
        so = s_ops(vWF[ks % 3], 0) if j % 2 == 0 else s_ops(vWF[(ks - 1) % 3], 1)
        if ks == 28: so += s_ops(vWE, 0)
        if ks == 29: so += s_ops(vWE, 1)
        if ks >= 30: so = []
        for i, s in enumerate(so): gaps[i * 8 // len(so)].append((s, None))
        if ks == 30:
            gaps[4] += I(f"""v_permlane32_swap_b32 v{vS0}, v{vS1}
s_lshl_b32 s{sT2}, s{sWAVE}, 8
s_add_u32 s{sT2}, s{sT2}, {L_XS}
v_add_f32 v{vS0}, v{vS0}, v{vS1}""")
            gaps[5] += I(f"""v_lshl_add_u32 v{vST0}, v{vLANE}, 2, s{sT2}
v_xor_b32 v{vST1}, 256, v{vST0}
ds_write_b32 v{vST0}, v{vS0}""")
            fx = [waitv("stats")] + stats_fix()
            for gi, n_ in ((2, 3), (3, 2), (4, 1), (5, 1), (6, 3), (7, 3)):
                gaps[gi] += fx[:n_]; fx = fx[n_:]
        if ks == 31:
            gaps[0] += I(f"ds_read_b32 v{vS1}, v{vST1}\nv_cmp_gt_u32 vcc, 32, v{vLANE}")
            for i, it in enumerate(fx): gaps[1 + i // 5].append(it)
            k0 = 1 + (len(fx) + 4) // 5
            sf = I(f"""s_waitcnt lgkmcnt(0)
v_add_f32 v{vS0}, v{vS0}, v{vS1}
v_mov_b32 v{SF+2}, 0
v_cvt_pk_bf16_f32 v{vST0}, v{vS0}, v{vS0}
v_mov_b32 v{SF+3}, 0
v_and_b32 v{vST1}, s{sMASK}, v{vST0}
v_sub_f32 v{vST1}, v{vS0}, v{vST1}
v_cndmask_b32 v{SF}, 0, v{vST0}, vcc
v_cvt_pk_bf16_f32 v{vST1}, v{vST1}, v{vST1}
v_cndmask_b32 v{SF+4}, v{vST0}, 0, vcc
v_mov_b32 v{SF+6}, 0
v_mov_b32 v{SF+7}, 0
v_cndmask_b32 v{SF+1}, 0, v{vST1}, vcc
v_cndmask_b32 v{SF+5}, v{vST1}, 0, vcc
s_nop 0""")
            for i, it in enumerate(sf): gaps[min(7, k0 + i * (8 - k0) // len(sf))].append(it)
        rate = OPT["rate0"] if ks < OPT["ks0"] else (OPT["rate"] if ks < 23 else OPT["crate"])
        if ks == 31: rate = 0
        n = 0
        while n < rate and n < len(q) and q[n][0] <= ks: n += 1
        for i in range(n):
            g = q.pop(0)[1]; gi = DG[-n + i]
            if g[0][0].startswith("s_add_u32 m0"):
                gaps[gi - 1].append(g[0]); g = g[1:]
            gaps[gi] += g
        if ks in eq:
            g0, g1 = eq[ks]
            m0 = cgroups([ks // 6])[0][:2]
            gaps[1] += m0 + [g0[-1]]; gaps[2] += [g1[-1]]
            gaps[3].insert(0, (f"s_mov_b32 m0, s{sU1}", None)); gaps[0].append((f"s_mov_b32 s{sU1}, m0", None))
        if early and ks in (6, 12, 18, 24):
            gaps[4] = [waitv(f"C{ks//6 - 1}")] + read_cunit(ks // 6 - 1) + gaps[4]
        if PF and ks in (OPT["pfk2"], OPT["pfk3"]):
            gaps[7] += [(f"buffer_load_dword v0, v{vREC+7}, s[{S_M}:{S_M+3}], s{sTO} offen", "pf"), (f"s_add_u32 s{sTO}, s{sTO}, s{sTS}", None)]
        if bt and ks >= OPT["btks"]: gaps[7].append((bt.pop(0), None))
        elif bx and ks >= OPT["bxks"]: gaps[4].append((bx.pop(0), None))
        e("s_waitcnt lgkmcnt(0)")
        for m, g in zip(mfmas(role, ks), gaps):
            e(m); puts(g)
    stamp(2)
    return [g for _, g in q], rank1(role, SF)

def stat_soff():
    e(f"""s_lshl_b32 s{sT2}, s{sRB}, 1
s_add_u32 s{sT2}, s{sT2}, s{sTG}
s_lshl_b32 s{sT3}, s{sT2}, 9
s_add_u32 s{sT3}, s{sT3}, {WS_R}
s_lshl_b32 s{sT2}, s{sT2}, 11
s_add_u32 s{sT2}, s{sT2}, {WS_STAT}""")
def mfrag_fix():
    return flat([I(f"v_mov_b32 v{vREC+4*b+1}, v{vREC+4*b}\nv_mov_b32 v{vREC+4*b+2}, 0\nv_mov_b32 v{vREC+4*b+3}, 0") for b in range(4)])

def p2_addrs(t):
    return I(f"""s_lshl_b32 s{sT0}, s{sNG}, 10
v_lshl_add_u32 v{vA0}, v{vLANE}, 4, s{sT0}
v_xor_b32 v{vA1}, 1024, v{vA0}
s_lshl_b32 s{sT0}, s{sXB}, 2
s_add_u32 s{sT0}, s{sT0}, s{sQ}
s_mul_i32 s{sDA}, s{sT0}, {86*2048}
s_mul_i32 s{sT1}, s{sWAVE}, {22*2048}
s_add_u32 s{sDA}, s{sDA}, s{sT1}
s_lshl_b32 s{sYA}, s{sT0}, 17
s_lshl_b32 s{sT1}, s{sWAVE}, 15
s_add_u32 s{sYA}, s{sYA}, s{sT1}
s_add_u32 s{sYA}, s{sYA}, {WS_H}
s_lshr_b32 s{sT0}, s{sT0}, 1
s_lshl_b32 s{sT0}, s{sT0}, 13
s_add_u32 s{sFG}, s{sT0}, {WS_FLAG}
s_mul_i32 s{sT1}, s{sWAVE}, 11
v_min_u32 v{vDF}, 10, v{vLANE}
v_add_u32 v{vDF}, s{sT1}, v{vDF}
v_min_u32 v{vDF}, 42, v{vDF}
v_lshlrev_b32 v{vDF}, 7, v{vDF}
s_lshl_b32 s{sT1}, s{sWAVE}, 2
s_add_u32 s{sT1}, s{sT1}, 48
v_min_u32 v{vYF}, 3, v{vLANE}
v_add_u32 v{vYF}, s{sT1}, v{vYF}
v_lshlrev_b32 v{vYF}, 7, v{vYF}
s_lshl_b32 s{sT0}, s{sXB}, 8
s_lshr_b32 s{sT1}, s{sQ}, 1
s_lshl_b32 s{sT1}, s{sT1}, 7
s_add_u32 s{sT0}, s{sT0}, s{sT1}
s_and_b32 s{sT1}, s{sQ}, 1
s_lshl_b32 s{sT1}, s{sT1}, 5
s_add_u32 s{sT0}, s{sT0}, s{sT1}
s_lshl_b32 s{sT1}, s{sNG}, 4
s_add_u32 s{sT0}, s{sT0}, s{sT1}
v_bfe_u32 v{t}, v{vLANE}, 4, 1
v_and_b32 v{t+1}, 15, v{vLANE}
v_lshl_add_u32 v{t}, v{t}, 6, v{t+1}
v_add_u32 v{t}, s{sT0}, v{t}
v_lshrrev_b32 v{vOA}, 3, v{vLANE}
v_add_u32 v{vOA}, s{sT0}, v{vOA}
s_lshl_b32 s{sT0}, s{sC0}, 7
s_lshl_b32 s{sT1}, s{sTG}, 6
s_add_u32 s{sT0}, s{sT0}, s{sT1}
v_and_b32 v{t+1}, 32, v{vLANE}
v_add_u32 v{vFD}, s{sT0}, v{t+1}
v_lshl_add_u32 v{vFX}, v{t}, 10, v{vFD}
v_lshlrev_b32 v{vFS}, 4, v{t}
v_add_u32 v{vFS}, {WS_STAT}, v{vFS}
s_lshl_b32 s{sT0}, s{sT0}, 1
v_and_b32 v{t+1}, 7, v{vLANE}
v_lshl_add_u32 v{t+1}, v{t+1}, 4, s{sT0}
v_lshl_add_u32 v{vOA}, v{vOA}, 11, v{t+1}
s_and_b32 s{sT0}, s{sTG}, s{sNG}
s_mul_i32 s{sT0}, s{sT0}, {OOB}
v_add_u32 v{vA0x}, s{sT0}, v{vA0}
v_add_u32 v{vA1x}, s{sT0}, v{vA1}""") + srd_l(S_M, P_D, 1024)
def fin_loads():
    L = []
    for g in range(2):
        L.append((f"buffer_load_dwordx4 {ar(A_DN+4*g,4)}, v{vFX}, s[{S_X}:{S_X+3}], 0 offen offset:{16*g}", "fin"))
        L.append((f"buffer_load_dwordx4 {ar(A_DN+8+4*g,4)}, v{vFD}, s[{S_M}:{S_M+3}], 0 offen offset:{16*g}", "fin"))
    L.append((f"buffer_load_dwordx4 {ar(A_DN+16,4)}, v{vFS}, s[{S_WS}:{S_WS+3}], 0 offen sc1", "fin"))
    return L
DFLAG = (f"buffer_load_dword v{vPL}, v{vDF}, s[{S_WS}:{S_WS+3}], s{sFG} offen sc1", "dflag")
def flag_off(add):
    return I(f"""s_lshl_b32 s{sT0}, s{sCT}, 1
s_add_u32 s{sT0}, s{sT0}, s{sNG}
s_lshl_b32 s{sT1}, s{sRB}, 1
s_add_u32 s{sT1}, s{sT1}, s{sTG}
s_lshl_b32 s{sT1}, s{sT1}, 6
s_add_u32 s{sT0}, s{sT0}, s{sT1}
s_lshl_b32 s{sT0}, s{sT0}, 7
s_add_u32 s{sFL}, s{sT0}, {WS_FLAG + 128*add}
v_mov_b32 v{vFA}, 0""")
def flag_put(t):
    e(f"v_mov_b32 v{t}, 1\ns_mov_b64 exec, 1")
    e.vm(f"buffer_store_dword v{t}, v{vFA}, s[{S_WS}:{S_WS+3}], s{sFL} offen sc1", "flag")
    e("s_mov_b64 exec, -1")

e(f"""s_mov_b32 s{S_W+2}, {512*2752}
s_mov_b32 s{sWSTEP}, 1376
s_lshl_b32 s{sT2}, s{sTG}, 5
v_add_u32 v11, s{sT2}, v6
v_mul_u32_u24 v11, 2752, v11
s_lshl_b32 s{sT2}, s{sCT}, 7
v_add3_u32 v11, v11, v14, s{sT2}""")
for i in range(4):
    e(f"v_add_u32 v{vWV+i}, {8*2752*i - 1024*i}, v11")
e(f"""s_cmp_lt_u32 s{sWAVE}, 2
s_waitcnt lgkmcnt(0)
s_cselect_b32 s{S_W}, s{P_WG}, s{P_WU}
s_cselect_b32 s{S_W+1}, s{P_WG+1}, s{P_WU+1}
s_mov_b32 s{S_X}, s{P_X}
s_mov_b32 s{S_X+1}, s{P_X+1}""")
def glu_pre():
    x_lds_addrs(f"v_bfe_u32 v2, v{vLANE}, 4, 1\nv_and_b32 v3, 15, v{vLANE}\nv_lshl_add_u32 v2, v2, 6, v3")
    e(f"""v_lshrrev_b32 v2, 5, v{vLANE}
v_bfe_u32 v3, v{vLANE}, 2, 2
v_lshl_add_u32 v2, v2, 3, v3
v_lshlrev_b32 v2, 7, v2
v_bfe_u32 v3, v{vLANE}, 4, 1
v_lshl_add_u32 v2, v3, 5, v2
v_and_b32 v3, 3, v{vLANE}
v_lshl_add_u32 v2, v3, 3, v2
v_bfe_u32 v3, v{vLANE}, 3, 1
v_xor_b32 v3, s{sNG}, v3
v_lshl_add_u32 v2, v3, 6, v2
s_lshl_b32 s{sT2}, s{sTG}, 11
s_add_u32 s{sT3}, s{sT2}, 32768
s_sub_u32 s{sT2}, 32768, s{sT2}
v_add_u32 v{vWA0}, s{sT3}, v2
v_add_u32 v{vWA0+1}, s{sT2}, v2
v_add_u32 v{vWA2}, {2*SLOT}, v{vWA0}
v_add_u32 v{vWA2+1}, {2*SLOT}, v{vWA0+1}""")
def glu_stats_load():
    stat_soff()
    e(f"v_bfe_u32 v4, v{vLANE}, 4, 1\nv_and_b32 v5, 15, v{vLANE}\nv_lshl_add_u32 v4, v4, 6, v5\nv_lshlrev_b32 v4, 4, v4")
    for b in range(4):
        e.vm(f"buffer_load_dwordx4 {vr(vREC+4*b,4)}, v4, s[{S_WS}:{S_WS+3}], s{sT2} offen offset:{256*b} sc1", "stats")
C1 = -2.0 * math.sqrt(2.0 / math.pi) * LOG2E
vKK = [32, 34, 40, 42]; vV = 48
def glu_stats_fix():
    L = []
    for b in range(4):
        T = vREC + 4 * b; K = vKK[b]
        L += I(f"""v_mul_f32 v{K}, {fbits(C1)}, v{T+1}
v_mul_f32 v{K+1}, v{T+1}, v{T+1}
v_mov_b32 v{vV+b}, v{T+2}
v_mul_f32 v{K+1}, {fbits(0.044715)}, v{K+1}
v_mul_f32 v{K+1}, v{K+1}, v{K}""")
    return L + mfrag_fix()
left, r1 = main_loop("glu", glu_pre, glu_stats_load, glu_stats_fix, OPT["eg"])
interleave(r1, I(f"""s_lshl_b32 s{sT0}, s{sCT}, 1
s_add_u32 s{sT0}, s{sT0}, s{sNG}
s_lshl_b32 s{sT1}, s{sRB}, 1
s_add_u32 s{sT1}, s{sT1}, s{sTG}
s_mul_i32 s{sT1}, s{sT1}, {2*86*2048}
s_lshl_b32 s{sT2}, s{sT0}, 12
s_add_u32 s{sAOFF}, s{sT1}, s{sT2}
s_add_u32 s{sT4}, s{sAOFF}, {86*2048}
s_cmp_eq_u32 s{sT0}, 43
s_cselect_b32 s{sT2}, {OOB}, 0
v_lshl_add_u32 v2, v{vLANE}, 4, s{sT2}""") + b_read_addrs(36))
stamp(3)
TA, TB, WA, WB = 96, 98, 100, 102
vO = [104, 112]
st_ = []
for b in range(4):
    K = vKK[b]; O = vO[b & 1]; V = vV + (b & ~1); o = b & 1
    for i in range(0, 8, 2):
        zA, zB = acc(b, 0) + 2 * i, acc(b, 0) + 2 * i + 2
        uA, uB = acc(b, 1) + 2 * i, acc(b, 1) + 2 * i + 2
        L = [f"v_pk_mul_f32 {vr(T,2)}, {vr(z,2)}, {vr(z,2)}" for T, z in ((TA, zA), (TB, zB))]
        L += [f"v_pk_fma_f32 {vr(T,2)}, {vr(T,2)}, {vr(K,2)}, {vr(K,2)} op_sel:[0,1,0] op_sel_hi:[1,1,0]" for T in (TA, TB)]
        L += [f"v_pk_mul_f32 {vr(T,2)}, {vr(T,2)}, {vr(z,2)}" for T, z in ((TA, zA), (TB, zB))]
        L += [f"v_exp_f32 v{r}, v{r}" for r in (TA, TA + 1, TB, TB + 1)]
        L += [f"v_pk_mul_f32 {vr(W,2)}, {vr(z,2)}, {vr(u,2)}" for W, z, u in ((WA, zA, uA), (WB, zB, uB))]
        L += [f"v_pk_fma_f32 {vr(T,2)}, {vr(T,2)}, {vr(V,2)}, {vr(V,2)} op_sel:[0,{o},{o}] op_sel_hi:[1,{o},{o}]" for T in (TA, TB)]
        L += [f"v_rcp_f32 v{r}, v{r}" for r in (TA, TA + 1, TB, TB + 1)]
        L += [f"v_pk_mul_f32 {vr(W,2)}, {vr(W,2)}, {vr(T,2)}" for W, T in ((WA, TA), (WB, TB))]
        L += [f"v_cvt_pk_bf16_f32 v{O+i}, v{WA}, v{WA+1}", f"v_cvt_pk_bf16_f32 v{O+i+1}, v{WB}, v{WB+1}"]
        st_ += [(x, None) for x in L]
        if i in (2, 6):
            fr = i >> 2
            st_.append((f"buffer_store_dwordx4 {vr(O+4*fr,4)}, v2, s[{S_WS}:{S_WS+3}], s{sAOFF if b < 2 else sT4} offen offset:{1024*(b&1) + 2048*fr} sc1", "hh"))
seq = bseq(left)
p1, seq = take(seq, OPT["nepi"])
st_ = sprinkle(st_, R0(), 0, 30)
puts(sprinkle(st_, p1, len(st_) * OPT["f0"] // 100, len(st_) * OPT["f1"] // 100))
stamp(4)
p1, seq = take(seq, OPT["npre"])
puts(sprinkle(flag_off(0) + p2_addrs(2), p1))
if OPT["finpre"]: puts(fin_loads())
e.vm_wait("hh")
flag_put(2)
if OPT["defer"]: e(f"v_mov_b32 v{vFA}, {OOB}")
stamp(5)
def with_dflag(seq, n):
    tot = sum(1 for g in seq if any(it[1] for it in g))
    a_, b_ = take(seq, max(0, tot - n))
    return flat(a_) + [DFLAG] + flat(b_)
puts(([] if OPT["finpre"] else fin_loads()) + with_dflag(seq, OPT["dpos"]))
stamp(7)
e.vm_wait("dflag")
spin_poll(vPL, vDF, S_WS, f"s{sFG}", first_loaded=True)
e("s_branch L_phase2")

e.vmq = []
e("L_ssm:")
vA, vCF, vq, vQ = 8, 10, 12, 6
e(f"""s_lshl_b32 s{sT1}, s{sT1}, 1
s_add_u32 s{sCT}, s{sT1}, s{sT0}
s_mov_b32 s{S_W+2}, 524288
s_mov_b32 s{sWSTEP}, 1
s_lshl_b32 s{sT2}, s{sTG}, 5
s_lshl_b32 s{sT3}, s{sCT}, 6
s_add_u32 s{sT2}, s{sT2}, s{sT3}
v_add_u32 v11, s{sT2}, v6
v_lshlrev_b32 v11, 10, v11
v_add_u32 v12, v11, v9
v_add_u32 v13, v11, v10""")
for i in range(4):
    e(f"v_add_u32 v{vWV+i}, {7168*i}, v{12 + (i&1)}")
vRHO = vREC + 6
e(f"""v_and_b32 v{vRHO}, 19, v{vLANE}
v_bfe_u32 v2, v{vLANE}, 2, 1
v_lshl_or_b32 v{vRHO}, v2, 3, v{vRHO}
v_bfe_u32 v2, v{vLANE}, 3, 1
v_lshl_or_b32 v{vRHO}, v2, 2, v{vRHO}
s_lshl_b32 s{sT2}, s{sNG}, 5
v_add_u32 v{vRHO}, s{sT2}, v{vRHO}
v_add_u32 v2, s{sT3}, v{vRHO}
v_lshlrev_b32 v2, 1, v2
s_mov_b32 s{S_M+2}, 1024
s_mov_b32 s{S_M+3}, 0x00020000
s_cmp_lt_u32 s{sWAVE}, 2
s_waitcnt lgkmcnt(0)
s_cselect_b32 s{S_W}, s{P_BRE}, s{P_BIM}
s_cselect_b32 s{S_W+1}, s{P_BRE+1}, s{P_BIM+1}
s_mov_b32 s{S_X}, s{P_X}
s_mov_b32 s{S_X+1}, s{P_X+1}""")
for p, r in ((P_LRE, vREC), (P_LIM, vREC + 1), (P_LDT, vREC + 2)):
    e(f"s_mov_b32 s{S_M}, s{p}\ns_mov_b32 s{S_M+1}, s{p+1}")
    e.vm(f"buffer_load_ushort v{r}, v2, s[{S_M}:{S_M+3}], 0 offen", "cst")
TAU_SSM = f"""v_bfe_u32 v{{0}}, v{vLANE}, 2, 1
v_and_b32 v{{1}}, 3, v{vLANE}
v_lshl_add_u32 v{{0}}, v{{0}}, 6, v{{1}}
v_bfe_u32 v{{1}}, v{vLANE}, 3, 2
v_lshl_add_u32 v{{0}}, v{{1}}, 2, v{{0}}"""
def ssm_pre():
    x_lds_addrs(TAU_SSM.format(2, 3))
    e(f"""v_lshrrev_b32 v3, 5, v{vLANE}
v_bfe_u32 v4, v{vRHO}, 1, 3
v_xor_b32 v4, v4, v3
s_lshl_b32 s{sT2}, s{sTG}, 1
v_xor_b32 v4, s{sT2}, v4
v_lshlrev_b32 v2, 7, v{vRHO}
v_add_u32 v2, 32768, v2""")
    for j in range(4):
        e(f"v_xor_b32 v5, {2*j}, v4\nv_lshl_add_u32 v{vWA0+j}, v5, 4, v2\nv_add_u32 v{vWA2+j}, {2*SLOT}, v{vWA0+j}")
    e.vm_wait("cst")
    lre, lim, t0, t1, t2, t3 = vREC, vREC + 1, vREC + 2, vREC + 3, vREC + 4, vREC + 5
    e(f"""v_lshlrev_b32 v{lre}, 16, v{lre}
v_lshlrev_b32 v{lim}, 16, v{lim}
v_lshlrev_b32 v{t0}, 16, v{t0}
v_mul_f32 v{t0}, {fbits(LOG2E)}, v{t0}
v_exp_f32 v{t0}, v{t0}
s_nop 0
v_cvt_pk_bf16_f32 v{t0}, v{t0}, v{t0}
v_and_b32 v{t0}, s{sMASK}, v{t0}
v_mul_f32 v{t1}, v{t0}, v{lre}
v_mul_f32 v{t2}, v{t0}, v{lim}
v_mul_f32 v{t1}, {fbits(LOG2E)}, v{t1}
v_mul_f32 v{t2}, {fbits(1/(2*math.pi))}, v{t2}
v_exp_f32 v{t1}, v{t1}
v_rndne_f32 v{t3}, v{t2}
v_sub_f32 v{t2}, v{t2}, v{t3}
v_cos_f32 v{t3}, v{t2}
v_sin_f32 v{t2}, v{t2}
v_mul_f32 v{vA}, v{t1}, v{t3}
v_mul_f32 v{t0}, v{lre}, v{lre}
v_mul_f32 v{vA+1}, v{t1}, v{t2}
v_fmac_f32 v{t0}, v{lim}, v{lim}
v_add_f32 v{t1}, -1.0, v{vA}
v_rcp_f32 v{t0}, v{t0}
v_mul_f32 v{t2}, v{t1}, v{lre}
v_mul_f32 v{t3}, v{vA+1}, v{lre}
v_fmac_f32 v{t2}, v{vA+1}, v{lim}
v_fma_f32 v{t3}, -v{t1}, v{lim}, v{t3}
v_add_f32 v{t0}, v{t0}, v{t0}
v_mul_f32 v{vCF}, v{t2}, v{t0}
v_mul_f32 v{vCF+1}, v{t3}, v{t0}""")
    cmul(4, vA, vA, 2)
    for k in range(5):
        cmul(vq if k % 2 == 0 else 4, 4 if k % 2 == 0 else vq, 4 if k % 2 == 0 else vq, 2)
    cmul(4, vq, vq, 2)
    cmul(vQ, 4, 4, 2)
def ssm_stats_load():
    stat_soff()
    e(TAU_SSM.format(4, 5) + "\nv_lshlrev_b32 v4, 4, v4")
    for b in range(4):
        e.vm(f"buffer_load_dword v{vREC+4*b}, v4, s[{S_WS}:{S_WS+3}], s{sT2} offen offset:{256*b} sc1", "stats")
    e(f"v_lshlrev_b32 v4, 3, v{vLANE}")
    e.vm(f"buffer_load_dwordx2 v[2:3], v4, s[{S_WS}:{S_WS+3}], s{sT3} offen sc1", "stats")
def ssm_stats_fix():
    return I(f"""s_lshl_b32 s{sT0}, s{sWAVE}, 9
s_add_u32 s{sT0}, s{sT0}, {L_XR}
v_lshl_add_u32 v4, v{vLANE}, 3, s{sT0}
v_lshrrev_b32 v5, 5, v{vLANE}
ds_write_b64 v4, v[2:3]
v_lshl_add_u32 v4, v5, 8, s{sT0}""") + mfrag_fix()
left, r1 = main_loop("ssm", ssm_pre, ssm_stats_load, ssm_stats_fix, OPT["es"])
vR = 32
rr = [(f"ds_read_b128 {vr(vR+4*g,4)}, v4 offset:{16*g}", None) for g in range(16)]
interleave(r1, b_read_addrs(2 + 96) + rr[:6])
puts(rr[6:])
stamp(3)
def Ub(b): return 96 if b == 0 else acc(b - 1, 0)
st_ = []
if OPT["cpost"]:
    st_.append(LGKM0)
    for t in range(64):
        U = Ub(t >> 4) + 2 * (t & 15)
        st_ += I(f"v_mul_f32 v{U}, v{vR+t}, v{acc(t>>4,0)+(t&15)}\nv_mul_f32 v{U+1}, v{vR+t}, v{acc(t>>4,1)+(t&15)}")
        if t: st_ += cfma_l(4, Ub(0) if t == 1 else 4, vA, U, 2)
else:
    for b in range(4):
        for r in range(16):
            o = r & 1
            st_.append((f"v_pk_mul_f32 {vr(Ub(b)+2*r,2)}, {vr(acc(b,0)+(r&~1),2)}, {vr(vCF,2)} op_sel:[{o},0] op_sel_hi:[{o},1]", None))
        for r in range(16):
            o = r & 1
            st_.append((f"v_pk_fma_f32 {vr(Ub(b)+2*r,2)}, {vr(acc(b,1)+(r&~1),2)}, {vr(vCF,2)}, {vr(Ub(b)+2*r,2)} op_sel:[{o},1,0] op_sel_hi:[{o},0,1] neg_lo:[0,1,0]", None))
    st_.append(LGKM0)
    for t in range(64):
        U = Ub(t >> 4) + 2 * (t & 15); o = t & 1
        st_.append((f"v_pk_mul_f32 {vr(U,2)}, {vr(U,2)}, {vr(vR+(t&~1),2)} op_sel:[0,{o}] op_sel_hi:[1,{o}]", None))
        if t: st_ += cfma_l(4, Ub(0) if t == 1 else 4, vA, U, 2)
seq = bseq(left)
p1, seq = take(seq, OPT["ns1"])
st_ = sprinkle(st_, R0(), 0, 30)
vLo, vHi, vPub, vGA, vQ1, vM, vPd, vAA = 32, 34, 36, 40, 48, 50, 52, 14
pubaddr = I(f"""s_lshl_b32 s{sT4}, s{sRB}, 1
s_add_u32 s{sT4}, s{sT4}, s{sTG}
s_lshl_b32 s{sT0}, s{sCT}, 1
s_add_u32 s{sT0}, s{sT0}, s{sNG}
s_lshl_b32 s{sT0}, s{sT0}, 9
s_lshl_b32 s{sT1}, s{sT4}, 13
s_add_u32 s{sT0}, s{sT0}, s{sT1}
s_add_u32 s{sT0}, s{sT0}, {WS_AGG}
v_and_b32 v{vAA}, 31, v{vLANE}
v_lshl_add_u32 v{vAA}, v{vAA}, 4, s{sT0}""")
k_ = len(st_) - 100
st_ = st_[:k_] + pubaddr + st_[k_:]
puts(sprinkle(st_, p1, 30, len(st_) - 10))
e(f"""v_mov_b32 v{vLo}, v4
v_mov_b32 v{vLo+1}, v5
v_mov_b32 v{vPub+1}, 1
v_mov_b32 v{vPub+3}, 1
v_permlane32_swap_b32 v{vLo}, v4
v_permlane32_swap_b32 v{vLo+1}, v5""")
cfma(vHi, vLo, vq, 4, 2)
e(f"v_mov_b32 v{vPub}, v{vHi}\nv_mov_b32 v{vPub+2}, v{vHi+1}\ns_mov_b32 exec_hi, 0")
e.vm(f"buffer_store_dwordx4 {vr(vPub,4)}, v{vAA}, s[{S_WS}:{S_WS+3}], 0 offen sc1", "pub")
e("s_mov_b64 exec, -1")
stamp(4)
vI, vG = 60, 224
def wait_work():
    cmul(vQ1, vq, vq, 2)
    e(f"""v_lshrrev_b32 v54, 5, v{vLANE}
v_sub_u32 v55, s{sT4}, v54
v_lshlrev_b32 v54, 13, v54
v_sub_u32 v54, v{vAA}, v54
v_mov_b32 v56, {WS_NUL}""")
    for k in range(8):
        e(f"v_cmp_lt_i32 vcc, {2*k}, v55\nv_subrev_u32 v{vGA+k}, {8192 + 16384*k}, v54\ns_nop 0\nv_cndmask_b32 v{vGA+k}, v56, v{vGA+k}, vcc")
    e(f"""v_cmp_lt_u32 vcc, 31, v{vLANE}
v_bfe_u32 v54, v{vLANE}, 4, 1
v_lshrrev_b32 v55, 5, v{vLANE}
v_cndmask_b32 v{vM}, 1.0, v{vq}, vcc
v_cndmask_b32 v{vM+1}, 0, v{vq+1}, vcc
v_cndmask_b32 v{vPd}, 0, v{vLo}, vcc
v_cndmask_b32 v{vPd+1}, 0, v{vLo+1}, vcc
v_cmp_eq_u32 vcc, v54, v55
v_and_b32 v54, 1, v{vLANE}
v_lshlrev_b32 v54, 4, v54
v_mov_b32 v55, 0x3f80
v_lshlrev_b32 v54, v54, v55
v_bfe_u32 v55, v{vLANE}, 1, 3
v_cndmask_b32 v54, 0, v54, vcc""")
    for k in range(8):
        e(f"v_cmp_eq_u32 vcc, {k}, v55\ns_nop 1\nv_cndmask_b32 v{vI+k}, 0, v54, vcc")
    e(f"""s_lshl_b32 s{sT0}, s{sCT}, 1
s_add_u32 s{sT0}, s{sT0}, s{sNG}
s_lshl_b32 s{sT0}, s{sT0}, 13
s_lshl_b32 s{sT1}, s{sT4}, 18
s_add_u32 s{sT0}, s{sT0}, s{sT1}
s_add_u32 s{sAOFF}, s{sT0}, {WS_H}
v_lshlrev_b32 v54, 4, v{vLANE}""")
p1, seq = take(seq, OPT["ns2"])
puts(sprinkle(capture(wait_work) + flag_off(48) + p2_addrs(56), p1))
Lp, Ld = e.label("agg"), e.label("aggd")
e(f"s_mov_b32 s{sCNT}, {SPIN}\n{Lp}:")
for k in range(8):
    e(f"buffer_load_dwordx4 {vr(vG+4*k,4)}, v{vGA+k}, s[{S_WS}:{S_WS+3}], 0 offen sc1")
e("s_waitcnt vmcnt(0)")
e.vmq = []
e(f"v_and_b32 v56, v{vG+1}, v{vG+3}")
for k in range(1, 8):
    e(f"v_and_b32 v57, v{vG+4*k+1}, v{vG+4*k+3}\nv_and_b32 v56, v56, v57")
e(f"""v_cmp_ne_u32 vcc, 0, v56
s_nop 1
s_cmp_eq_u64 vcc, -1
s_cbranch_scc1 {Ld}
s_sub_u32 s{sCNT}, s{sCNT}, 1
s_cbranch_scc0 {Lp}
{Ld}:""")
puts(([] if OPT["dlate"] else [DFLAG]) + ([] if OPT["sfin"] else fin_loads()))
for k in range(8):
    e(f"v_mov_b32 v{vG+4*k+1}, v{vG+4*k+2}")
cfma(4, vG + 28, vQ, vG + 24, 2)
for k in range(5, -1, -1):
    cfma(4, 4, vQ, vG + 4 * k, 2)
e(f"v_mov_b32 v{vLo}, v4\nv_mov_b32 v{vLo+1}, v5\ns_nop 1\nv_permlane32_swap_b32 v{vLo}, v4\nv_permlane32_swap_b32 v{vLo+1}, v5")
cfma(4, 4, vQ1, vLo, 2)
cfma(4, 4, vM, vPd, 2)
stamp(5)
vP, vO2 = 68, 36
def d2_out(b):
    out = []
    for ci in range(2):
        out.append((f"s_add_u32 s{sT0}, s{sAOFF}, {(b>>1)*64*2048 + ci*4096}", None))
        for fr in range(2):
            for i in range(4):
                r = Ub(b) + 16 * ci + 8 * fr + 2 * i
                out.append((f"v_cvt_pk_bf16_f32 v{vO2+8*ci+4*fr+i}, v{r}, v{r+1}", None))
            out.append((f"buffer_store_dwordx4 {vr(vO2+8*ci+4*fr,4)}, v54, s[{S_WS}:{S_WS+3}], s{sT0} offen offset:{1024*(b&1)+2048*fr} sc1", "h"))
    return out
for b in range(4):
    st_ = flat([cfma_l(Ub(b) + 2 * r, 4 if r == 0 else Ub(b) + 2 * r - 2, vA, Ub(b) + 2 * r, 2) for r in range(16)])
    p1, seq = take(seq, OPT["ns5"])
    puts(sprinkle(st_, p1))
    e(f"v_mov_b32 v4, v{Ub(b)+30}\nv_mov_b32 v5, v{Ub(b)+31}")
    if OPT["cpost"]:
        for r in range(16): cmul(Ub(b) + 2 * r, Ub(b) + 2 * r, vCF, 2)
    for i in range(8): e(f"v_cvt_pk_bf16_f32 v{vP+i}, v{Ub(b)+4*i}, v{Ub(b)+4*i+2}")
    for i in range(8): e(f"v_cvt_pk_bf16_f32 v{vP+8+i}, -v{Ub(b)+4*i+1}, -v{Ub(b)+4*i+3}")
    e("s_nop 0")
    ms = []
    for h_ in range(2):
        for ci in range(2):
            D = vr(Ub(b) + 16 * ci, 16)
            ms.append(f"v_mfma_f32_32x32x16_bf16 {D}, {vr(vP+8*ci+4*h_,4)}, {vr(vI+4*h_,4)}, {D if h_ else '0'}")
    interleave(ms, d2_out(b - 1) if b else [])
e("s_nop 11")
puts(d2_out(3))
stamp(14)
if OPT["dlate"]: put(DFLAG)
if OPT["sfin"]: puts(fin_loads())
if not OPT["defer"]:
    p1, seq = take(seq, OPT["ns3"])
    puts(flat(p1))
    e.vm_wait("h")
    flag_put(2)
puts(flat(seq))
stamp(6)
e.vm_wait(["dflag", "fin"])
spin_poll(vPL, vDF, S_WS, f"s{sFG}", first_loaded=True)
e("s_branch L_phase2")

e.vmq = []
e("; ---------------- stats role")
e("L_stats:")
set_plan(0)
e(f"""s_sub_u32 s{sCT}, s{sCT}, 22
s_lshl_b32 s{sT0}, s{sRB}, 1
s_add_u32 s{sT4}, s{sT0}, s{sCT}
s_lshl_b32 s{sT0}, s{sT4}, 7
s_lshl_b32 s{sT1}, s{sWAVE}, 5
s_add_u32 s{sT5}, s{sT0}, s{sT1}
v_add_u32 v2, s{sT5}, v8
v_lshlrev_b32 v2, 10, v2
v_and_b32 v3, 15, v{vLANE}
v_lshl_add_u32 v2, v3, 4, v2
s_waitcnt lgkmcnt(0)
s_mov_b32 s{S_X}, s{P_X}
s_mov_b32 s{S_X+1}, s{P_X+1}""")
for u in range(8):
    e(f"s_mov_b32 s{sT0}, {4096*u}")
    for i in range(4):
        e.vm(f"buffer_load_dwordx4 {vr(128+16*u+4*i,4)}, v2, s[{S_X}:{S_X+3}], s{sT0} offen offset:{256*i}", f"x{u}")
if OPT["xt"]: x_touch()
late_setup()
e(f"""v_mov_b32 v4, 0
v_mov_b32 v5, 0
v_mov_b32 v6, 0
v_mov_b32 v7, 0
s_lshl_b32 s{sT0}, s{sT4}, 13
s_add_u32 s{sT0}, s{sT0}, {WS_AGG}
s_add_u32 s{sT1}, s{sT0}, 4096
s_lshl_b32 s{sT2}, s{sWAVE}, 10
v_lshl_add_u32 v9, v{vLANE}, 4, s{sT2}""")
e.vm(f"buffer_store_dwordx4 v[4:7], v9, s[{S_WS}:{S_WS+3}], s{sT0} offen sc1", "z")
e.vm(f"buffer_store_dwordx4 v[4:7], v9, s[{S_WS}:{S_WS+3}], s{sT1} offen sc1", "z")
e(f"""s_lshl_b32 s{sT0}, s{sT4}, 13
s_lshl_b32 s{sT1}, s{sWAVE}, 11
s_add_u32 s{sT0}, s{sT0}, s{sT1}
s_add_u32 s{sT0}, s{sT0}, {WS_FLAG}
v_lshlrev_b32 v9, 7, v3""")
e.vm(f"buffer_store_dword v4, v9, s[{S_WS}:{S_WS+3}], s{sT0} offen sc1", "z")
e(f"""s_or_b32 s{sT0}, s{sT4}, s{sWAVE}
s_mov_b32 s{sT1}, {WS_NUL}
s_cmp_eq_u32 s{sT0}, 0
s_cselect_b32 s{sT0}, s{sT1}, {OOB}
v_mov_b32 v9, s{sT0}
v_mov_b32 v80, 0
v_mov_b32 v81, 1
v_mov_b32 v82, 0
v_mov_b32 v83, 1
s_mov_b64 exec, 1""")
e.vm(f"buffer_store_dwordx4 v[80:83], v9, s[{S_WS}:{S_WS+3}], 0 offen sc1", "z")
e("s_mov_b64 exec, -1")
for f in b_touch(): f()
e("v_mov_b32 v10, 0x3f803f80")
vSU, vSQ = 64, 72
for u in range(8):
    e.vm_wait(f"x{u}")
    d = 128 + 16 * u
    e(f"v_dot2_f32_bf16 v{vSU+u}, v{d}, v10, 0\nv_dot2_f32_bf16 v{vSQ+u}, v{d}, v{d}, 0\ns_nop 1")
    for i in range(1, 16):
        e(f"v_dot2_f32_bf16 v{vSU+u}, v{d+i}, v10, v{vSU+u}\nv_dot2_f32_bf16 v{vSQ+u}, v{d+i}, v{d+i}, v{vSQ+u}")
e("s_nop 2")
for sh in (8, 4, 2, 1):
    for r in range(vSU, vSU + 16):
        e(f"v_add_f32_dpp v{r}, v{r}, v{r} row_ror:{sh} row_mask:0xf bank_mask:0xf")
for u in range(1, 8):
    e(f"v_cmp_eq_u32 vcc, {u}, v3\ns_nop 1\nv_cndmask_b32 v{vSU}, v{vSU}, v{vSU+u}, vcc\nv_cndmask_b32 v{vSQ}, v{vSQ}, v{vSQ+u}, vcc")
e(f"""v_mul_f32 v7, {fbits(1/512)}, v{vSU}
v_mul_f32 v6, {fbits(1/512)}, v{vSQ}
v_fma_f32 v6, -v7, v7, v6
v_max_f32 v6, 0, v6
v_add_f32 v6, {fbits(1e-5)}, v6
v_rsq_f32 v5, v6
v_cvt_pk_bf16_f32 v4, -v7, -v7
v_and_b32 v9, s{sMASK}, v4
v_sub_f32 v9, -v7, v9
v_cvt_pk_bf16_f32 v9, v9, v9
v_lshrrev_b32 v4, 16, v4
v_and_or_b32 v4, v9, s{sMASK}, v4
v_lshl_add_u32 v9, v3, 2, v8
v_add_u32 v9, s{sT5}, v9
v_lshlrev_b32 v11, 4, v9
v_lshlrev_b32 v12, 2, v9
v_cmp_gt_u32 vcc, 8, v3
s_mov_b32 s{sT0}, {WS_STAT}
s_mov_b32 s{sT1}, {WS_R}
s_mov_b64 exec, vcc""")
e.vm(f"buffer_store_dwordx4 v[4:7], v11, s[{S_WS}:{S_WS+3}], s{sT0} offen sc1", "z")
e.vm(f"buffer_store_dword v5, v12, s[{S_WS}:{S_WS+3}], s{sT1} offen sc1", "z")
e("s_mov_b64 exec, -1")
e.vm_wait_all()
e("s_barrier")
srd(S_M, P_DBG, 256)
e(f"""s_lshl_b32 s{sT0}, s{sT4}, 2
s_cmp_eq_u32 s{sWAVE}, 0
s_cselect_b32 s{sT0}, s{sT0}, {OOB}
v_mov_b32 v2, s{sT0}
v_mov_b32 v3, 1
s_mov_b64 exec, 1""")
e.vm(f"buffer_store_dword v3, v2, s[{S_M}:{S_M+3}], 0 offen sc1", "sig")
e("s_mov_b64 exec, -1")
stamp(20 if 'leak' in OPT else 1)
puts(b_read_addrs(4) + flat(cgroups(range(8)) + dgroups([0])) + flat(R0() + bseq([])))
e(f"v_min_u32 v2, 15, v{vLANE}\nv_lshlrev_b32 v2, 2, v2")
spin_poll(3, 2, S_M, "0")
stamp(21 if 'leak' in OPT else 2)
e(f"v_mov_b32 v{vFA}, {OOB}\ns_mov_b32 s{sFL}, 0")
puts(p2_addrs(2) + fin_loads())
spin_poll(vPL, vDF, S_WS, f"s{sFG}")

e("; ---------------- phase 2")
e("L_phase2:")
e.vmq = ["?"]
stamp(8)
vRW, vRR, vYR, vTR, vRW2, vTW, vL16 = 32, 35, 37, 38, 12, 8, 7
def a_loads(ks, tag, y=False):
    B = vAB + 8 * ((ks + (22 if y else 0)) % NB)
    a0, a1 = (vA0x, vA1x) if ks >= 20 else (vA0, vA1)
    so = sYA if y else sDA
    L = [[(f"buffer_load_dwordx4 {vr(B,4)}, v{a0}, s[{S_WS}:{S_WS+3}], s{so} offen offset:{2048*(ks&1)} sc1", tag)],
         [(f"buffer_load_dwordx4 {vr(B+4,4)}, v{a1}, s[{S_WS}:{S_WS+3}], s{so} offen offset:{2048*(ks&1)} sc1", tag)]]
    if ks & 1: L[1].append((f"s_add_u32 s{so}, s{so}, 4096", None))
    return L
def p2_mfmas(D0, wreg, ks):
    return [f"v_mfma_f32_32x32x16_bf16 {ar(D0+16*i,16)}, {wreg(i&1)}, {vr(vAB + 8*((ks + (22 if D0 == A_Y else 0)) % NB) + 4*(i>>1), 4)}, {'0' if ks == 0 else ar(D0+16*i,16)}" for i in range(4)]
LEAD = OPT["lead"]
q = [g for ks in range(22) for g in a_loads(ks, f"a{ks}")] + [g for ks in range(16) for g in a_loads(ks, f"y{ks}", True)]
puts(flat(q[:2 * LEAD])); q = q[2 * LEAD:]
for r in range(20):
    e(f"v_accvgpr_read_b32 v{vXQ+r}, a{A_DN+r}")
srd(S_M, P_OUT, 4194304)
for base in (vXQ, vDQ):
    for k in (0, 1, 4, 5):
        e(f"v_permlane32_swap_b32 v{base+k}, v{base+k+2}")
def early_work():
    e(f"v_lshlrev_b32 v{vL16}, 4, v{vLANE}")
    for i in range(1, 4):
        e(f"s_xor_b32 s{sT0}, s{sWAVE}, {i}")
        if i < 3:
            e(f"s_mul_i32 s{sT0}, s{sT0}, 12288\ns_add_u32 s{sT1}, s{sT0}, {2*SLOT + 4096*i}")
        else:
            e(f"s_lshl_b32 s{sT1}, s{sT0}, 12\ns_add_u32 s{sT1}, s{sT1}, {L_MISC}\ns_mul_i32 s{sT0}, s{sT0}, 12288")
        e(f"v_add_u32 v{vRW+i-1}, s{sT1}, v{vL16}\ns_add_u32 s{sT0}, s{sT0}, {4096*(i-1)}\nv_add_u32 v{vRW2+i-1}, s{sT0}, v{vL16}")
    e(f"""s_lshl_b32 s{sT0}, s{sWAVE}, 12
s_add_u32 s{sT0}, s{sT0}, {L_MISC}
v_add_u32 v{vRR}, s{sPB0}, v{vL16}
v_add_u32 v{vRR+1}, s{sT0}, v{vL16}
v_add_u32 v{vYR}, s{sPB1}, v{vL16}
s_add_u32 s{sT0}, s{sPB1}, {SLOT}
v_and_b32 v2, 31, v{vLANE}
v_lshl_add_u32 v2, v2, 7, s{sT0}
v_lshrrev_b32 v3, 5, v{vLANE}
v_and_b32 v4, 7, v{vLANE}
v_xor_b32 v3, v3, v4
v_lshl_add_u32 v{vTW}, v3, 4, v2
v_xor_b32 v{vTW+1}, 32, v{vTW}
v_xor_b32 v{vTW+2}, 64, v{vTW}
v_xor_b32 v{vTW+3}, 96, v{vTW}
v_lshrrev_b32 v3, 3, v{vLANE}
v_xor_b32 v4, v4, v3
v_lshl_add_u32 v3, v3, 7, s{sT0}
v_lshl_add_u32 v{vTR}, v4, 4, v3
s_mov_b32 s{sO1}, {8*2048}
s_mov_b32 s{sO2}, {64*2048}
s_mov_b32 s{sO3}, {72*2048}""")
    for k in range(8):
        j = (k & 1) + 2 * [0, 2, 1, 3][k >> 1]
        e(f"""v_lshlrev_b32 v{vXFf+2*k}, 16, v{vXQ+j}
v_and_b32 v{vXFf+2*k+1}, s{sMASK}, v{vXQ+j}
v_lshlrev_b32 v{vGt+2*k}, 16, v{vDQ+j}
v_and_b32 v{vGt+2*k+1}, s{sMASK}, v{vDQ+j}""")
    for r in range(16):
        e(f"v_sub_f32 v{vZ+r}, v{vXFf+r}, v{vRC+3}\nv_mul_f32 v{vGt+r}, v{vGt+r}, v{vRC+1}\nv_mul_f32 v{vZ+r}, v{vZ+r}, v{vGt+r}")
pre_ = capture(early_work)
KY = 22 - LEAD
for ks in range(22):
    e.vm_wait(f"a{ks}")
    if ks >= 8: e("s_waitcnt lgkmcnt(0)")
    gaps = [[] for _ in range(4)]
    if ks == 0 and OPT["defer"]: gaps[0].append((lambda: flag_put(5), None))
    if ks == 7: gaps[3].append(("s_barrier", None))
    if 8 <= ks + 1 < 22:
        for ds in range(2):
            r0 = vWB[(ks + 1) & 1] + 4 * ds
            gaps[ds] += dfrag_reads((ks + 1) >> 1, (ks + 1) & 1, ds, lambda o, r0=r0: vr(r0 + o, 2))
    for gi in range(4):
        n_ = 5 - len(gaps[gi]) - (gi >= 2)
        gaps[gi] += pre_[:n_]; pre_ = pre_[n_:]
    if ks == KY - 3:
        gaps[0].append((f"buffer_load_dword v{vPL}, v{vYF}, s[{S_WS}:{S_WS+3}], s{sFG} offen sc1", "yflag"))
    if ks == KY:
        def chk():
            e.vm_wait("yflag"); stamp(9)
            spin_poll(vPL, vYF, S_WS, f"s{sFG}", first_loaded=True); stamp(10)
        gaps[1].append((chk, None))
    for gi in (2, 3): gaps[gi] += q.pop(0)
    wreg = (lambda d: ar(A_Y + 8 * ks + 4 * d, 4)) if ks < 8 else (lambda d: vr(vWB[ks & 1] + 4 * d, 4))
    for m, g in zip(p2_mfmas(A_DN, wreg, ks), gaps):
        e(m); puts(g)
assert not pre_
stamp(11)
tmp = [56, 224, 240]
def down_finish():
    e("s_nop 5")
    for i in range(1, 4):
        for qd in range(4):
            e(f"ds_write_b128 v{vRW+i-1}, {ar(A_DN+16*i+4*qd,4)} offset:{1024*qd}")
    for r in range(16): e(f"v_accvgpr_read_b32 v{vGt+r}, a{A_DN+r}")
    e("s_waitcnt lgkmcnt(0)\ns_barrier")
    for i in range(3):
        for qd in range(4):
            e(f"ds_read_b128 {vr(tmp[i]+4*qd,4)}, v{vRR + (i == 2)} offset:{(4096*(i+1) if i < 2 else 0) + 1024*qd}")
    for i in range(3):
        e(f"s_waitcnt lgkmcnt({8-4*i})")
        for r in range(16): e(f"v_add_f32 v{vGt+r}, v{vGt+r}, v{tmp[i]+r}")
    e(f"s_mov_b32 s{sT0}, {fbits(-LOG2E)}")
    for r in range(16): e(f"v_mul_f32 v{40+r}, s{sT0}, v{vGt+r}")
    for r in range(16): e(f"v_exp_f32 v{40+r}, v{40+r}")
    for r in range(16): e(f"v_add_f32 v{40+r}, 1.0, v{40+r}")
    for r in range(16): e(f"v_rcp_f32 v{40+r}, v{40+r}")
    for r in range(16): e(f"v_mul_f32 v{vGt+r}, v{vGt+r}, v{40+r}")
st_ = capture(down_finish)
if OPT.get("noys"): puts(st_); st_ = []
NPG = math.ceil(len(st_) / 56)
for ks in range(14):
    e.vm_wait(f"y{ks}")
    gaps = [[] for _ in range(4)]
    for gi in (1, 3):
        if q: gaps[gi] += q.pop(0)
    for gi in range(4):
        if OPT["ybal"]:
            c_ = len(gaps[gi])
            while st_ and c_ < OPT.get("ycap", 4):
                it = st_.pop(0); gaps[gi].append(it)
                c_ += 2 if it[0].startswith(("v_exp", "v_rcp", "ds_write")) else 1
        else:
            gaps[gi] += st_[:NPG]; st_ = st_[NPG:]
    for m, g in zip(p2_mfmas(A_Y, lambda d: ar(A_C + 8 * ks + 4 * d, 4), ks), gaps):
        e(m); puts(g)
assert not q
puts(st_)
m14, m15 = (p2_mfmas(A_Y, lambda d: ar(A_C + 8 * ks + 4 * d, 4), ks) for ks in (14, 15))
e.vm_wait("y14")
for m in m14[1:]: e(m)
e.vm_wait("y15")
for m in m15[1:] + [m14[0], m15[0]]: e(m)
stamp(12)
e("s_nop 7")
for i in range(1, 4):
    for qd in range(4):
        e(f"ds_write_b128 v{vRW2+i-1}, {ar(A_Y+16*i+4*qd,4)} offset:{1024*qd}")
for r in range(16): e(f"v_accvgpr_read_b32 v{40+r}, a{A_Y+r}")
for r in range(0, 16, 2): e(f"v_pk_add_f32 {vr(vZ+r,2)}, {vr(vZ+r,2)}, {vr(40+r,2)}")
e("s_waitcnt lgkmcnt(0)\ns_barrier")
stamp(15)
for qd in range(4):
    for i in range(3):
        e(f"ds_read_b128 {vr(96+16*i+4*qd,4)}, v{vYR} offset:{4096*i + 1024*qd}")
for g in range(4):
    e(f"s_waitcnt lgkmcnt({9 - 2*g})")
    for i in range(3):
        for r in (4 * g, 4 * g + 2): e(f"v_pk_add_f32 {vr(vZ+r,2)}, {vr(vZ+r,2)}, {vr(96+16*i+r,2)}")
    for r in (4 * g, 4 * g + 2): e(f"v_pk_fma_f32 {vr(vZ+r,2)}, {vr(vZ+r,2)}, {vr(vGt+r,2)}, {vr(vXFf+r,2)}")
    e(f"ds_write_b128 v{vTW+g}, {vr(vZ+4*g,4)}")
for i in range(4): e(f"ds_read_b128 {vr(144+4*i,4)}, v{vTR} offset:{1024*i}")
for i in range(4):
    e(f"s_waitcnt lgkmcnt({3-i})")
    e.vm(f"buffer_store_dwordx4 {vr(144+4*i,4)}, v{vOA}, s[{S_M}:{S_M+3}], {['0', f's{sO1}', f's{sO2}', f's{sO3}'][i]} offen{OUTF}", "out")
if OPT["stamp"]:
    stamp(16); e.vm_wait_all(); stamp(13)
    e(f"""s_lshl_b32 s{sT0}, s2, 2
s_add_u32 s{sT0}, s{sT0}, s{sWAVE}
s_lshl_b32 s{sT0}, s{sT0}, 8
s_add_u32 s{sT0}, s{sT0}, {WS_STAMP}
v_lshlrev_b32 v14, 2, v{vLANE}
buffer_store_dword v15, v14, s[{S_WS}:{S_WS+3}], s{sT0} offen""")
if "leak" in OPT:
    e("s_waitcnt vmcnt(0)")
    stamp(13)
    e(f"""s_sub_u32 s3, s3, s100
s_lshl_b32 s3, s3, 1
s_memrealtime s[{sST}:{sST+1}]
s_waitcnt lgkmcnt(0)
s_add_u32 s3, s3, s{sST}
Lleak:
s_memrealtime s[{sST}:{sST+1}]
s_waitcnt lgkmcnt(0)
s_cmp_lt_u32 s{sST}, s3
s_cbranch_scc1 Lleak""")
e(f"""L_end:
s_endpgm
.section .rodata,"a"
.p2align 6
.amdhsa_kernel {KN}
.amdhsa_next_free_vgpr 512
.amdhsa_next_free_sgpr {102 if 'leak' in OPT else 100}
.amdhsa_accum_offset 256
.amdhsa_group_segment_fixed_size 0
.amdhsa_kernarg_size 128
.amdhsa_user_sgpr_count 2
.amdhsa_user_sgpr_kernarg_segment_ptr 1
.amdhsa_system_sgpr_workgroup_id_x 1
.amdhsa_float_denorm_mode_32 3
.end_amdhsa_kernel""")
txt = e.text()
probs = check_hazards(txt)
for p in probs: sys.stderr.write(p + "\n")
sys.stderr.write(f"{len(probs)} hazard findings, {len(txt)} bytes\n")
open(sys.argv[1], "w").write(txt)
```

```python
import sys, math, struct
from asmlib import *

NAME = "recurrent_scan__ssm_conv_s5__glu_gated_geglu__prompt"
KN = NAME + "_kernel"
OPT = dict(stamp=False, rot=1, p2map=1, bt=1, btks=10, crate=3, rate0=4, ks0=8, rate=3, pre1=6,
           nepi=14, f0=5, f1=80, npre=8, ns1=12, ns2=14, ns5=2, ns3=10, defer=0, lead=6, outf=0)
for a_ in sys.argv[2:]:
    k_, _, v_ = a_.partition("=")
    OPT[k_] = (int(v_) if v_ else True)

WS_HH, WS_H, WS_STAT, WS_R, WS_NUL, WS_AGG, WS_FLAG, WS_STAMP, WS_SIZE = (
    0, 0x600000, 0xA00000, 0xA10000, 0xA18000, 0xA20000, 0xA40000, 0xA80000, 0xB00000)
SLOT = 49152
L_MISC = 3 * SLOT
L_XS = L_MISC
L_XR = L_MISC + 1024
LDS_BYTES = 163840
SPIN = 200000
OOB = 0x7f000000
LOG2E = 1.4426950408889634
def fbits(x): return "0x%08x" % struct.unpack("<I", struct.pack("<f", x))[0]

S_X, S_W, S_WS, S_CRE, S_CIM, S_WD, S_M = 4, 8, 12, 16, 20, 24, 28
P_X, P_LRE, P_LIM, P_BRE, P_BIM, P_CRE, P_CIM, P_LDT = 32, 34, 36, 38, 40, 42, 44, 46
P_D, P_BX, P_WG, P_WU, P_WD, P_OUT, P_DBG, P_WSP = 48, 50, 52, 54, 56, 58, 60, 62
sWAVE, sRB, sCT, sXB, sQ, sC0, sTG, sNG = 64, 65, 66, 67, 68, 69, 70, 71
sXOFF, sWOFF, sWSTEP, sMX, sMW, sPB0, sPB1 = 72, 73, 74, 75, 76, 77, 78
sT0, sT1, sT2, sT3, sCNT, sMASK = 79, 80, 81, 82, 83, 84
sCOFF, sDOFF, sAOFF, sU0 = 85, 87, 88, 89
sST, sT4, sT5, sPC = 90, 92, 93, 94
sO1, sO2, sO3 = 96, 97, 98
sAC, sYA, sFG, sFL, sDA = sXOFF, sWOFF, sWSTEP, sMX, sMW

vLANE = 1
vCV, vDV = 16, 20
vXV, vWV = 24, 32
vXA0, vXA2, vWA0, vWA2 = 36, 40, 44, 48
vS0, vS1, vST0, vST1 = 52, 53, 54, 55
vREC = 56
vSF = 72
vXF = [80, 104]
vWF = [96, 120, 72]
vACC = 128
def acc(b, c): return vACC + 16 * (2 * b + c)
vCA, vDA, vDA2 = 24, 28, 30
vA0, vA1, vA0x, vA1x, vOA, vDF, vYF, vFA, vPL, vFX, vFD, vFS = range(84, 96)
vWB = [40, 48]
vAB, NB = 96, 10
vZ, vXFf, vGt = 176, 192, 208
vXQ, vDQ, vRC = 224, 232, 240
A_C, A_DN, A_Y = 0, 128, 192

e = Emit()
OUTF = {0: '', 1: ' sc1', 2: ' nt', 3: ' sc0 sc1'}[OPT['outf']]

def I(txt):
    return [(x.strip(), None) for x in txt.strip("\n").split("\n") if x.strip()]
def put(item):
    s, tag = item
    if callable(s): s()
    elif tag: e.vm(s, tag)
    else: e(s)
def puts(items):
    for it in items: put(it)
def capture(f):
    sv = e.lines; e.lines = []
    f()
    out = [(x.strip(), None) for x in e.lines]; e.lines = sv
    return out
def srd_l(d, base, nbytes):
    return I(f"s_mov_b32 s{d}, s{base}\ns_mov_b32 s{d+1}, s{base+1}\ns_mov_b32 s{d+2}, {nbytes}\ns_mov_b32 s{d+3}, 0x00020000")
def srd(d, base, nbytes): puts(srd_l(d, base, nbytes))
def waitv(tags): return (lambda: e.vm_wait(tags), None)
LGKM0 = ("s_waitcnt lgkmcnt(0)", None)
def flat(groups): return [it for g in groups for it in g]
def atoms(items, n=1): return [items[i:i+n] for i in range(0, len(items), n)]
def sprinkle(stream, side, start=0, end=None):
    end = len(stream) if end is None else end
    out = []; k = 0; n = len(side)
    for i, it in enumerate(stream):
        out.append(it)
        if start <= i < end:
            upto = math.ceil(n * (i - start + 1) / (end - start))
            while k < upto:
                out += side[k]; k += 1
    while k < n:
        out += side[k]; k += 1
    return out
def interleave(ms, fill):
    n = len(ms); k = 0
    for i, m in enumerate(ms):
        e(m)
        upto = math.ceil(len(fill) * (i + 1) / n)
        while k < upto:
            put(fill[k]); k += 1
def groups_of(lst):
    groups = []; cur = []
    for it in lst:
        cur.append(it)
        if it[1]:
            groups.append(cur); cur = []
    if cur: groups[-1] += cur
    return groups
def take(seq, n):
    k = 0
    for i, g in enumerate(seq):
        if k == n: return seq[:i], seq[i:]
        if any(it[1] for it in g): k += 1
    return seq, []

def stamp(i):
    if "leak" in OPT:
        if i == 0: e("s_memrealtime s[100:101]\ns_waitcnt lgkmcnt(0)\ns_mov_b32 s3, s100")
        if i == OPT["leak"]: e(f"s_memrealtime s[{sST}:{sST+1}]\ns_waitcnt lgkmcnt(0)\ns_mov_b32 s3, s{sST}")
    if OPT["stamp"]:
        e(f"s_memrealtime s[{sST}:{sST+1}]\ns_waitcnt lgkmcnt(0)\nv_writelane_b32 v15, s{sST}, {i}")
        if OPT.get("clk"):
            e(f"s_memtime s[{sST}:{sST+1}]\ns_waitcnt lgkmcnt(0)\nv_writelane_b32 v15, s{sST}, {i+32}")

def spin_poll(vdst, vaddr, srd_, soff, first_loaded=False):
    L = e.label("poll"); D = e.label("pdone"); C = e.label("pchk")
    e(f"s_mov_b32 s{sCNT}, {SPIN}")
    if first_loaded: e(f"s_branch {C}")
    e(f"""{L}:
buffer_load_dword v{vdst}, v{vaddr}, s[{srd_}:{srd_+3}], {soff} offen sc1
s_waitcnt vmcnt(0)
{C}:
v_cmp_ne_u32 vcc, 0, v{vdst}
s_nop 1
s_cmp_eq_u64 vcc, -1
s_cbranch_scc1 {D}
s_sub_u32 s{sCNT}, s{sCNT}, 1
s_cbranch_scc1 {D}
s_sleep 1
s_branch {L}
{D}:""")
    if not first_loaded: e.vmq = []

def cfma_l(dst, x, y, z, tmp):
    return [(f"v_pk_fma_f32 {vr(tmp,2)}, {vr(x,2)}, {vr(y,2)}, {vr(z,2)} op_sel:[1,1,0] op_sel_hi:[0,1,1] neg_lo:[0,1,0]", None),
            (f"v_pk_fma_f32 {vr(dst,2)}, {vr(x,2)}, {vr(y,2)}, {vr(tmp,2)} op_sel:[0,0,0] op_sel_hi:[1,0,1]", None)]
def cfma(*a): puts(cfma_l(*a))
def cmul(dst, x, y, tmp):
    e(f"v_pk_mul_f32 {vr(tmp,2)}, {vr(x,2)}, {vr(y,2)} op_sel:[1,1] op_sel_hi:[0,1] neg_lo:[0,1]")
    e(f"v_pk_fma_f32 {vr(dst,2)}, {vr(x,2)}, {vr(y,2)}, {vr(tmp,2)} op_sel:[0,0,0] op_sel_hi:[1,0,1]")

hdr = open("cdna_kernels/" + NAME + ".s.ref").read().split("; Override launch")[0]
e.lines.append(hdr.rstrip("\n"))
e(f"; @launch grid=(256,1,1) block=(256,1,1) lds={LDS_BYTES}")
e(f""".amdgcn_target "amdgcn-amd-amdhsa--gfx950"
.text
.globl {KN}
.p2align 8
.type {KN},@function
{KN}:
s_cmp_ge_u32 s2, 256
s_cbranch_scc1 L_end
s_load_dwordx16 s[32:47], s[0:1], 0
s_load_dwordx16 s[48:63], s[0:1], 64
s_getpc_b64 s[{sPC}:{sPC+1}]
Lpc0:
v_lshrrev_b32 v2, 6, v0
v_and_b32 v{vLANE}, 63, v0
s_lshr_b32 s{sT0}, s2, 3
v_readfirstlane_b32 s{sWAVE}, v2""")
if OPT["stamp"]: e("v_mov_b32 v15, 0")
stamp(0)
e(f"""s_and_b32 s{sRB}, s2, 1
s_lshl_b32 s{sRB}, s{sRB}, 2
s_and_b32 s{sT1}, s{sT0}, 3
s_add_u32 s{sRB}, s{sRB}, s{sT1}
s_lshr_b32 s{sT0}, s{sT0}, 2
s_bfe_u32 s{sT1}, s2, 0x20001
v_lshrrev_b32 v6, 3, v{vLANE}
v_and_b32 v7, 7, v{vLANE}
v_lshrrev_b32 v8, 4, v{vLANE}
v_xor_b32 v9, v7, v8
v_lshlrev_b32 v9, 4, v9
v_xor_b32 v10, 64, v9
s_and_b32 s{sTG}, s{sWAVE}, 1
s_lshr_b32 s{sNG}, s{sWAVE}, 1
s_lshl_b32 s{sMX}, s{sWAVE}, 13
s_lshl_b32 s{sMW}, s{sWAVE}, 12
s_add_u32 s{sMW}, s{sMW}, 32768
s_lshl_b32 s{sT2}, s{sRB}, 8
s_lshl_b32 s{sT3}, s{sWAVE}, 6
s_add_u32 s{sT2}, s{sT2}, s{sT3}
v_add_u32 v11, s{sT2}, v6
v_lshlrev_b32 v11, 10, v11
v_add_u32 v12, v11, v9
v_add_u32 v13, v11, v10""")
for i in range(8):
    e(f"v_add_u32 v{vXV+i}, {8192*i - 1024*(i&3)}, v{12 + (i&1)}")
e(f"""v_and_b32 v11, 1, v8
v_lshlrev_b32 v11, 2, v11
v_xor_b32 v11, v11, v7
v_lshlrev_b32 v14, 4, v11""")
e({0: f"s_mov_b32 s{sXOFF}, 0",
   1: f"s_lshl_b32 s{sXOFF}, s{sRB}, 1\ns_add_u32 s{sXOFF}, s{sXOFF}, s{sT0}\ns_and_b32 s{sXOFF}, s{sXOFF}, 3\ns_lshl_b32 s{sXOFF}, s{sXOFF}, 8",
   2: f"s_lshl_b32 s{sXOFF}, s{sRB}, 1\ns_add_u32 s{sXOFF}, s{sXOFF}, s{sT0}\ns_and_b32 s{sXOFF}, s{sXOFF}, 7\ns_lshl_b32 s{sXOFF}, s{sXOFF}, 7",
   3: f"s_xor_b32 s{sXOFF}, s{sRB}, s{sT0}\ns_and_b32 s{sXOFF}, s{sXOFF}, 1\ns_lshl_b32 s{sXOFF}, s{sXOFF}, 9"}[OPT["rot"]])
e(f"""s_mov_b32 s{S_X+2}, 2097152
s_mov_b32 s{S_X+3}, 0x00020000
s_mov_b32 s{S_W+3}, 0x00020000
s_cmp_lt_u32 s{sT0}, 2
s_cbranch_scc1 L_ssm
s_mul_i32 s{sT1}, s{sT1}, 6
s_add_u32 s{sCT}, s{sT1}, s{sT0}
s_sub_u32 s{sCT}, s{sCT}, 2
s_cmp_ge_u32 s{sCT}, 22
s_cbranch_scc1 L_stats""")

def late_setup():
    e(f"s_mov_b32 s{sMASK}, 0xffff0000")
    srd(S_WS, P_WSP, WS_SIZE); srd(S_CRE, P_CRE, 524288); srd(S_CIM, P_CIM, 524288); srd(S_WD, P_WD, 1376 * 1024)
    if OPT["p2map"] == 1:
        e(f"""s_lshr_b32 s{sT2}, s2, 3
s_bfe_u32 s{sQ}, s{sT2}, 0x20002
s_and_b32 s{sC0}, s{sT2}, 3
s_and_b32 s{sT3}, s2, 1
s_lshl_b32 s{sT3}, s{sT3}, 2
s_add_u32 s{sC0}, s{sC0}, s{sT3}
s_and_b32 s{sXB}, s2, 6
s_lshr_b32 s{sT2}, s{sT2}, 4
s_add_u32 s{sXB}, s{sXB}, s{sT2}""")
    else:
        e(f"s_and_b32 s{sXB}, s2, 7\ns_lshr_b32 s{sQ}, s2, 6\ns_bfe_u32 s{sC0}, s2, 0x30003")
    e(f"""s_mul_i32 s{sPB1}, s{sWAVE}, 12288
s_add_u32 s{sPB0}, s{sPB1}, {2*SLOT}
s_lshl_b32 s{sCOFF}, s{sWAVE}, 8
s_lshl_b32 s{sT2}, s{sTG}, 15
s_add_u32 s{sCOFF+1}, s{sCOFF}, 32768
s_sub_u32 s{sCOFF+1}, s{sCOFF+1}, s{sT2}
s_add_u32 s{sCOFF}, s{sCOFF}, s{sT2}
s_mul_i32 s{sDOFF}, s{sWAVE}, {352*1024}
s_lshl_b32 s{sT2}, s{sC0}, 6
v_add_u32 v11, s{sT2}, v6
v_lshlrev_b32 v11, 10, v11
v_add_u32 v12, v11, v9
v_add_u32 v13, v11, v10""")
    for i in range(4):
        e(f"v_add_u32 v{vCV+i}, {7168*i}, v{12 + (i&1)}")
    e(f"s_lshl_b32 s{sT2}, s{sC0}, 7\nv_lshl_add_u32 v11, v6, 10, v14\nv_add_u32 v11, s{sT2}, v11")
    for i in range(4):
        e(f"v_add_u32 v{vDV+i}, {7168*i}, v11")

def code_touch():
    e(f"""s_bfe_u32 s{sT2}, s2, 0x30003
s_lshl_b32 s{sT2}, s{sT2}, 2
s_add_u32 s{sT2}, s{sT2}, s{sWAVE}
s_mul_i32 s{sT2}, s{sT2}, ((L_end-Lpc0)/128+32)/32
v_min_u32 v0, ((L_end-Lpc0)/128+32)/32-1, v{vLANE}
v_add_u32 v0, s{sT2}, v0
v_lshlrev_b32 v0, 7, v0
v_min_u32 v0, L_end-Lpc0, v0
s_mov_b64 exec, 0xffff""")
    e.vm(f"global_load_dword v0, v0, s[{sPC}:{sPC+1}]", "code")
    e("s_mov_b64 exec, -1")

def b_touch():
    def f0():
        e(f"""s_lshl_b32 s{sT2}, s2, 2
s_add_u32 s{sT2}, s{sT2}, s{sWAVE}
s_mul_i32 s{sT3}, s{sT2}, {11*128}
s_lshl_b32 s{sT2}, s{sT2}, 9
v_lshlrev_b32 v2, 7, v{vLANE}""")
    def f1():
        e("s_mov_b64 exec, 0x7ff")
        e.vm(f"buffer_load_dword v0, v2, s[{S_WD}:{S_WD+3}], s{sT3} offen", "bt")
        e("s_mov_b64 exec, 15")
        e.vm(f"buffer_load_dword v0, v2, s[{S_CRE}:{S_CRE+3}], s{sT2} offen", "bt")
        e.vm(f"buffer_load_dword v0, v2, s[{S_CIM}:{S_CIM+3}], s{sT2} offen", "bt")
        e("s_mov_b64 exec, -1")
    return [f0, f1] if OPT["bt"] else []

def dma_stage(stage):
    sb = (stage % 3) * SLOT
    out = [(f"s_add_u32 m0, s{sMW}, {sb}", None), (f"s_mul_i32 s{sWOFF}, s{sXOFF}, s{sWSTEP}", None)]
    for i in range(4):
        out.append((f"buffer_load_dwordx4 v{vWV+i}, s[{S_W}:{S_W+3}], s{sWOFF} offen offset:{1024*i} lds", f"st{stage}"))
    for i in range(8):
        if i % 4 == 0:
            out.append((f"s_add_u32 m0, s{sMX}, {sb + 4096*(i>>2)}", None))
        out.append((f"buffer_load_dwordx4 v{vXV+i}, s[{S_X}:{S_X+3}], s{sXOFF} offen offset:{1024*(i&3)} lds", f"st{stage}"))
    out += I(f"s_add_u32 s{sXOFF}, s{sXOFF}, 128\ns_and_b32 s{sXOFF}, s{sXOFF}, 0x3ff")
    return groups_of(out)
def padded(g):
    return [g[0], ("s_nop 0", None)] + g[1:] if (g[0][0].startswith("s_add_u32 m0") and g[1][1]) else g

def pos_m0(pos):
    p, k = pos
    return (sPB0, 4096 * k) if p == 0 else (sPB1, 4096 * k + (SLOT if p == 2 else 0))
CPOS = {u: (u // 3, u % 3) for u in range(8)}
DPOS = {0: (2, 2), 1: (0, 0), 2: (0, 1), 3: (0, 2), 4: (1, 0), 5: (1, 1), 6: (1, 2), 7: (2, 0), 8: (2, 1), 9: (2, 2), 10: (0, 0)}
def cgroups(us):
    out = []
    for u in us:
        ph, ci, ds = u >> 2, (u >> 1) & 1, u & 1
        sb, off = pos_m0(CPOS[u]); s = S_CIM if ci else S_CRE
        L = I(f"s_add_u32 m0, s{sb}, {off}\ns_add_u32 s{sU0}, s{sCOFF+ds}, {128*ph}")
        L += [(f"buffer_load_dwordx4 v{vCV+i}, s[{s}:{s+3}], s{sU0} offen offset:{1024*i} lds", f"C{u}") for i in range(4)]
        out += groups_of(L)
    return out
def dgroups(us):
    out = []
    for u in us:
        sb, off = pos_m0(DPOS[u])
        L = I(f"s_add_u32 m0, s{sb}, {off}\ns_add_u32 s{sU0}, s{sDOFF}, {32768*u}")
        L += [(f"buffer_load_dwordx4 v{vDV+i}, s[{S_WD}:{S_WD+3}], s{sU0} offen offset:{1024*i} lds", f"D{u}") for i in range(4)]
        out += groups_of(L)
    return out
def read_cunit(u):
    ph, ci, ds = u >> 2, (u >> 1) & 1, u & 1
    p, k = CPOS[u]
    off = 4096 * k + (SLOT if p == 2 else 0)
    return [(f"ds_read_b128 {ar(A_C + 8*(4*(2*ph + (jp>>1)) + 2*ci + (jp&1)) + 4*ds, 4)}, v{vCA+jp} offset:{off}", None) for jp in range(4)]
def dfrag_reads(u, jj, ds, dst):
    p, k = DPOS[u]
    base = vDA2 if p == 0 else vDA
    off = 4096 * k + (SLOT if p == 2 else 0) + 2048 * jj
    return [(f"ds_read_b64_tr_b16 {dst(2*ee)}, v{base+ds} offset:{off + 1024*ee}", None) for ee in range(2)]
def read_dunit(u):
    out = []
    for jj in range(2):
        for ds in range(2):
            r0 = A_Y + 8 * (2 * u + jj) + 4 * ds
            out += dfrag_reads(u, jj, ds, lambda o: ar(r0 + o, 2))
    return out
def b_read_addrs(t):
    L = f"""v_and_b32 v{t}, 31, v{vLANE}
v_lshrrev_b32 v{t+1}, 5, v{vLANE}
v_bfe_u32 v{t+2}, v{vLANE}, 1, 3
v_xor_b32 v{t+2}, v{t+2}, v{t+1}
v_lshlrev_b32 v{t}, 7, v{t}
v_add_u32 v{t}, s{sPB0}, v{t}
"""
    for j in range(4):
        L += f"v_xor_b32 v{t+3}, {2*j}, v{t+2}\nv_lshl_add_u32 v{vCA+j}, v{t+3}, 4, v{t}\n"
    L += f"""v_bfe_u32 v{t}, v{vLANE}, 2, 2
v_lshl_add_u32 v{t}, v{t+1}, 2, v{t}
v_lshlrev_b32 v{t}, 7, v{t}
v_add_u32 v{t}, s{sPB1}, v{t}
v_bfe_u32 v{t+2}, v{vLANE}, 4, 1
v_lshl_add_u32 v{t}, v{t+2}, 5, v{t}
v_and_b32 v{t+2}, 3, v{vLANE}
v_lshl_add_u32 v{t}, v{t+2}, 3, v{t}
v_bfe_u32 v{t+2}, v{vLANE}, 3, 1
v_xor_b32 v{t+2}, s{sTG}, v{t+2}
v_lshl_add_u32 v{vDA}, v{t+2}, 6, v{t}
v_xor_b32 v{vDA+1}, 64, v{vDA}
v_add_u32 v{vDA2}, {2*SLOT}, v{vDA}
v_add_u32 v{vDA2+1}, {2*SLOT}, v{vDA+1}"""
    return I(L)
def R0(): return [[waitv("C2")]] + atoms(read_cunit(0) + read_cunit(1) + read_cunit(2), 2) + [I("\n".join(f"v_subrev_u32 v{vCA+j}, {2*SLOT}, v{vCA+j}" for j in range(4)))]
def R1(): return [[waitv("C5")]] + atoms(read_cunit(3) + read_cunit(4) + read_cunit(5), 2)
def R2(): return [[waitv("D0")]] + atoms(read_cunit(6) + read_cunit(7) + read_dunit(0), 2)
def R3(): return [[waitv("D3")]] + atoms(read_dunit(1) + read_dunit(2) + read_dunit(3), 2)
def bseq(left):
    return left + [[LGKM0]] + dgroups([1, 2, 3]) + R1() + [[LGKM0]] + dgroups([4, 5, 6]) + R2() + [[LGKM0]] + dgroups([7, 8, 9]) + R3() + [[LGKM0]] + dgroups([10])

def x_lds_addrs(tau0_code):
    e(tau0_code)
    e(f"""v_lshrrev_b32 v3, 5, v{vLANE}
v_bfe_u32 v4, v2, 1, 3
v_xor_b32 v4, v4, v3
s_lshl_b32 s{sT2}, s{sTG}, 14
v_lshlrev_b32 v2, 7, v2
v_add_u32 v2, s{sT2}, v2
s_lshl_b32 s{sT2}, s{sTG}, 1
v_xor_b32 v4, s{sT2}, v4""")
    for j in range(4):
        e(f"v_xor_b32 v5, {2*j}, v4\nv_lshl_add_u32 v{vXA0+j}, v5, 4, v2\nv_add_u32 v{vXA2+j}, {2*SLOT}, v{vXA0+j}")
def w_reads(role, ks, W):
    stage, j = ks // 4, ks % 4
    slot = stage % 3; so = 0 if slot == 2 else slot * SLOT; wa = vWA2 if slot == 2 else vWA0
    if role == "ssm":
        return [[f"ds_read_b128 {vr(W+4*c, 4)}, v{wa+j} offset:{so + 8192*c}"] for c in range(2)]
    return [[f"ds_read_b64_tr_b16 {vr(W+4*c+2*ee, 2)}, v{wa+(j&1)} offset:{so + 8192*c + 2048*j + 512*ee}" for ee in range(2)] for c in range(2)]
def frag_reads(role, ks):
    stage, j = ks // 4, ks % 4
    slot = stage % 3; so = 0 if slot == 2 else slot * SLOT; xa = vXA2 if slot == 2 else vXA0
    wr = w_reads(role, ks, vWF[ks % 3])
    xr = [f"ds_read_b128 {vr(vXF[ks&1]+4*b, 4)}, v{xa+j} offset:{so + 2048*b}" for b in range(4)]
    return wr[0] + [xr[0]] + wr[1] + xr[1:]
def s_ops(W, c):
    out = []
    for d in range(4):
        w = W + 4 * c + d; s = vS0 + c
        out += [f"v_lshlrev_b32 v{vST0}, 16, v{w}", f"v_and_b32 v{vST1}, s{sMASK}, v{w}",
                f"v_add_f32 v{s}, v{s}, v{vST0}", f"v_add_f32 v{s}, v{s}, v{vST1}"]
    return out
def mfmas(role, ks):
    out = []
    for b in range(4):
        for c in range(2):
            A = vr(vWF[ks % 3] + 4 * c, 4); B = vr(vXF[ks & 1] + 4 * b, 4)
            if role == "ssm": A, B = B, A
            D = vr(acc(b, c), 16)
            out.append(f"v_mfma_f32_32x32x16_bf16 {D}, {A}, {B}, {'0' if ks == 0 else D}")
    return out
def rank1(role, SF):
    out = []
    for b in range(4):
        for c in range(2):
            A = vr(SF + 4 * c, 4); B = vr(vREC + 4 * b, 4)
            if role == "ssm": A, B = B, A
            D = vr(acc(b, c), 16)
            out.append(f"v_mfma_f32_32x32x16_bf16 {D}, {A}, {B}, {D}")
    return out

def main_loop(role, pre, stats_load, stats_fix):
    for g in dma_stage(0): puts(padded(g))
    late_setup()
    code_touch()
    pre()
    e(f"v_mov_b32 v{vS0}, 0\nv_mov_b32 v{vS1}, 0")
    q = [(0, g) for g in dma_stage(1)]
    for _ in range(OPT["pre1"]): puts(padded(q.pop(0)[1]))
    q += [(0, g) for g in dma_stage(2)]
    for st in range(3, 8):
        q += [(4 * (st - 3) + 3, g) for g in dma_stage(st)]
    q += [(23, g) for g in cgroups([0, 1, 2])] + [(27, g) for g in cgroups([3, 4, 5])] + [(31, g) for g in cgroups([6, 7]) + dgroups([0])]
    e.vm_wait("st0")
    e("s_barrier")
    stamp(1)
    for s in frag_reads(role, 0): e(s)
    DG = [4, 5, 6, 7]
    bt = b_touch()
    vWE = vXV
    SF = vSF
    for ks in range(32):
        stage, j = ks // 4, ks % 4
        gaps = [[] for _ in range(8)]
        if j == 3:
            if OPT.get("fine"): gaps[0].append((lambda stage=stage: stamp(16 + 2 * stage), None))
            if stage < 7:
                assert not any(it[1] == f"st{stage+1}" for _, g in q for it in g)
                gaps[0].append(waitv(["st7", "dbg"] if stage == 6 else [f"st{stage+1}"]))
            gaps[0].append(("s_barrier", None))
            if OPT.get("fine"): gaps[0].append((lambda stage=stage: stamp(17 + 2 * stage), None))
        if ks < 31:
            for i, s in enumerate(frag_reads(role, ks + 1)): gaps[i // 2].append((s, None))
        if ks == 23:
            def f():
                srd(S_M, P_DBG, 256)
                e(f"v_min_u32 v2, 15, v{vLANE}\nv_lshlrev_b32 v2, 2, v2")
                e.vm(f"buffer_load_dword v3, v2, s[{S_M}:{S_M+3}], 0 offen sc1", "dbg")
            gaps[3].append((f, None))
        if ks == 27:
            gaps[3].append((lambda: (spin_poll(3, 2, S_M, "0", first_loaded=True), stats_load()), None))
            gaps[4] += [(s, None) for s in flat(w_reads(role, 30, vWE))]
        so = s_ops(vWF[ks % 3], 0) if j % 2 == 0 else s_ops(vWF[(ks - 1) % 3], 1)
        if ks == 28: so += s_ops(vWE, 0)
        if ks == 29: so += s_ops(vWE, 1)
        if ks >= 30: so = []
        for i, s in enumerate(so): gaps[i * 8 // len(so)].append((s, None))
        if ks == 30:
            gaps[4] += I(f"""v_permlane32_swap_b32 v{vS0}, v{vS1}
s_lshl_b32 s{sT2}, s{sWAVE}, 8
s_add_u32 s{sT2}, s{sT2}, {L_XS}
v_add_f32 v{vS0}, v{vS0}, v{vS1}""")
            gaps[5] += I(f"""v_lshl_add_u32 v{vST0}, v{vLANE}, 2, s{sT2}
v_xor_b32 v{vST1}, 256, v{vST0}
ds_write_b32 v{vST0}, v{vS0}""")
            fx = [waitv("stats")] + stats_fix()
            for gi, n_ in ((2, 3), (3, 2), (4, 1), (5, 1), (6, 3), (7, 3)):
                gaps[gi] += fx[:n_]; fx = fx[n_:]
        if ks == 31:
            gaps[0] += I(f"ds_read_b32 v{vS1}, v{vST1}\nv_cmp_gt_u32 vcc, 32, v{vLANE}")
            for i, it in enumerate(fx): gaps[1 + i // 5].append(it)
            k0 = 1 + (len(fx) + 4) // 5
            sf = I(f"""s_waitcnt lgkmcnt(0)
v_add_f32 v{vS0}, v{vS0}, v{vS1}
v_mov_b32 v{SF+2}, 0
v_cvt_pk_bf16_f32 v{vST0}, v{vS0}, v{vS0}
v_mov_b32 v{SF+3}, 0
v_and_b32 v{vST1}, s{sMASK}, v{vST0}
v_sub_f32 v{vST1}, v{vS0}, v{vST1}
v_cndmask_b32 v{SF}, 0, v{vST0}, vcc
v_cvt_pk_bf16_f32 v{vST1}, v{vST1}, v{vST1}
v_cndmask_b32 v{SF+4}, v{vST0}, 0, vcc
v_mov_b32 v{SF+6}, 0
v_mov_b32 v{SF+7}, 0
v_cndmask_b32 v{SF+1}, 0, v{vST1}, vcc
v_cndmask_b32 v{SF+5}, v{vST1}, 0, vcc
s_nop 0""")
            for i, it in enumerate(sf): gaps[min(7, k0 + i * (8 - k0) // len(sf))].append(it)
        rate = OPT["rate0"] if ks < OPT["ks0"] else (OPT["rate"] if ks < 23 else OPT["crate"])
        if ks == 31: rate = 0
        n = 0
        while n < rate and n < len(q) and q[n][0] <= ks: n += 1
        for i in range(n):
            g = q.pop(0)[1]; gi = DG[-n + i]
            if g[0][0].startswith("s_add_u32 m0"):
                gaps[gi - 1].append(g[0]); g = g[1:]
            gaps[gi] += g
        if bt and ks >= OPT["btks"]: gaps[7].append((bt.pop(0), None))
        e("s_waitcnt lgkmcnt(0)")
        for m, g in zip(mfmas(role, ks), gaps):
            e(m); puts(g)
    stamp(2)
    return [g for _, g in q], rank1(role, SF)

def stat_soff():
    e(f"""s_lshl_b32 s{sT2}, s{sRB}, 1
s_add_u32 s{sT2}, s{sT2}, s{sTG}
s_lshl_b32 s{sT3}, s{sT2}, 9
s_add_u32 s{sT3}, s{sT3}, {WS_R}
s_lshl_b32 s{sT2}, s{sT2}, 11
s_add_u32 s{sT2}, s{sT2}, {WS_STAT}""")
def mfrag_fix():
    return flat([I(f"v_mov_b32 v{vREC+4*b+1}, v{vREC+4*b}\nv_mov_b32 v{vREC+4*b+2}, 0\nv_mov_b32 v{vREC+4*b+3}, 0") for b in range(4)])

def p2_addrs(t):
    return I(f"""s_lshl_b32 s{sT0}, s{sNG}, 10
v_lshl_add_u32 v{vA0}, v{vLANE}, 4, s{sT0}
v_xor_b32 v{vA1}, 1024, v{vA0}
s_lshl_b32 s{sT0}, s{sXB}, 2
s_add_u32 s{sT0}, s{sT0}, s{sQ}
s_mul_i32 s{sDA}, s{sT0}, {86*2048}
s_mul_i32 s{sT1}, s{sWAVE}, {22*2048}
s_add_u32 s{sDA}, s{sDA}, s{sT1}
s_lshl_b32 s{sYA}, s{sT0}, 17
s_lshl_b32 s{sT1}, s{sWAVE}, 15
s_add_u32 s{sYA}, s{sYA}, s{sT1}
s_add_u32 s{sYA}, s{sYA}, {WS_H}
s_lshr_b32 s{sT0}, s{sT0}, 1
s_lshl_b32 s{sT0}, s{sT0}, 13
s_add_u32 s{sFG}, s{sT0}, {WS_FLAG}
s_mul_i32 s{sT1}, s{sWAVE}, 11
v_min_u32 v{vDF}, 10, v{vLANE}
v_add_u32 v{vDF}, s{sT1}, v{vDF}
v_min_u32 v{vDF}, 42, v{vDF}
v_lshlrev_b32 v{vDF}, 7, v{vDF}
s_lshl_b32 s{sT1}, s{sWAVE}, 2
s_add_u32 s{sT1}, s{sT1}, 48
v_min_u32 v{vYF}, 3, v{vLANE}
v_add_u32 v{vYF}, s{sT1}, v{vYF}
v_lshlrev_b32 v{vYF}, 7, v{vYF}
s_lshl_b32 s{sT0}, s{sXB}, 8
s_lshr_b32 s{sT1}, s{sQ}, 1
s_lshl_b32 s{sT1}, s{sT1}, 7
s_add_u32 s{sT0}, s{sT0}, s{sT1}
s_and_b32 s{sT1}, s{sQ}, 1
s_lshl_b32 s{sT1}, s{sT1}, 5
s_add_u32 s{sT0}, s{sT0}, s{sT1}
s_lshl_b32 s{sT1}, s{sNG}, 4
s_add_u32 s{sT0}, s{sT0}, s{sT1}
v_bfe_u32 v{t}, v{vLANE}, 4, 1
v_and_b32 v{t+1}, 15, v{vLANE}
v_lshl_add_u32 v{t}, v{t}, 6, v{t+1}
v_add_u32 v{t}, s{sT0}, v{t}
v_lshrrev_b32 v{vOA}, 3, v{vLANE}
v_add_u32 v{vOA}, s{sT0}, v{vOA}
s_lshl_b32 s{sT0}, s{sC0}, 7
s_lshl_b32 s{sT1}, s{sTG}, 6
s_add_u32 s{sT0}, s{sT0}, s{sT1}
v_and_b32 v{t+1}, 32, v{vLANE}
v_add_u32 v{vFD}, s{sT0}, v{t+1}
v_lshl_add_u32 v{vFX}, v{t}, 10, v{vFD}
v_lshlrev_b32 v{vFS}, 4, v{t}
v_add_u32 v{vFS}, {WS_STAT}, v{vFS}
s_lshl_b32 s{sT0}, s{sT0}, 1
v_and_b32 v{t+1}, 7, v{vLANE}
v_lshl_add_u32 v{t+1}, v{t+1}, 4, s{sT0}
v_lshl_add_u32 v{vOA}, v{vOA}, 11, v{t+1}
s_and_b32 s{sT0}, s{sTG}, s{sNG}
s_mul_i32 s{sT0}, s{sT0}, {OOB}
v_add_u32 v{vA0x}, s{sT0}, v{vA0}
v_add_u32 v{vA1x}, s{sT0}, v{vA1}""") + srd_l(S_M, P_D, 1024)
def fin_loads():
    L = []
    for g in range(2):
        L.append((f"buffer_load_dwordx4 {ar(A_DN+4*g,4)}, v{vFX}, s[{S_X}:{S_X+3}], 0 offen offset:{16*g}", "fin"))
        L.append((f"buffer_load_dwordx4 {ar(A_DN+8+4*g,4)}, v{vFD}, s[{S_M}:{S_M+3}], 0 offen offset:{16*g}", "fin"))
    L.append((f"buffer_load_dwordx4 {ar(A_DN+16,4)}, v{vFS}, s[{S_WS}:{S_WS+3}], 0 offen sc1", "fin"))
    return L
DFLAG = (f"buffer_load_dword v{vPL}, v{vDF}, s[{S_WS}:{S_WS+3}], s{sFG} offen sc1", "dflag")
def flag_off(add):
    return I(f"""s_lshl_b32 s{sT0}, s{sCT}, 1
s_add_u32 s{sT0}, s{sT0}, s{sNG}
s_lshl_b32 s{sT1}, s{sRB}, 1
s_add_u32 s{sT1}, s{sT1}, s{sTG}
s_lshl_b32 s{sT1}, s{sT1}, 6
s_add_u32 s{sT0}, s{sT0}, s{sT1}
s_lshl_b32 s{sT0}, s{sT0}, 7
s_add_u32 s{sFL}, s{sT0}, {WS_FLAG + 128*add}
v_mov_b32 v{vFA}, 0""")
def flag_put(t):
    e(f"v_mov_b32 v{t}, 1\ns_mov_b64 exec, 1")
    e.vm(f"buffer_store_dword v{t}, v{vFA}, s[{S_WS}:{S_WS+3}], s{sFL} offen sc1", "flag")
    e("s_mov_b64 exec, -1")

e(f"""s_mov_b32 s{S_W+2}, {512*2752}
s_mov_b32 s{sWSTEP}, 1376
s_lshl_b32 s{sT2}, s{sTG}, 5
v_add_u32 v11, s{sT2}, v6
v_mul_u32_u24 v11, 2752, v11
s_lshl_b32 s{sT2}, s{sCT}, 7
v_add3_u32 v11, v11, v14, s{sT2}""")
for i in range(4):
    e(f"v_add_u32 v{vWV+i}, {8*2752*i - 1024*i}, v11")
e(f"""s_cmp_lt_u32 s{sWAVE}, 2
s_waitcnt lgkmcnt(0)
s_cselect_b32 s{S_W}, s{P_WG}, s{P_WU}
s_cselect_b32 s{S_W+1}, s{P_WG+1}, s{P_WU+1}
s_mov_b32 s{S_X}, s{P_X}
s_mov_b32 s{S_X+1}, s{P_X+1}""")
def glu_pre():
    x_lds_addrs(f"v_bfe_u32 v2, v{vLANE}, 4, 1\nv_and_b32 v3, 15, v{vLANE}\nv_lshl_add_u32 v2, v2, 6, v3")
    e(f"""v_lshrrev_b32 v2, 5, v{vLANE}
v_bfe_u32 v3, v{vLANE}, 2, 2
v_lshl_add_u32 v2, v2, 3, v3
v_lshlrev_b32 v2, 7, v2
v_bfe_u32 v3, v{vLANE}, 4, 1
v_lshl_add_u32 v2, v3, 5, v2
v_and_b32 v3, 3, v{vLANE}
v_lshl_add_u32 v2, v3, 3, v2
v_bfe_u32 v3, v{vLANE}, 3, 1
v_xor_b32 v3, s{sNG}, v3
v_lshl_add_u32 v2, v3, 6, v2
s_lshl_b32 s{sT2}, s{sTG}, 11
s_add_u32 s{sT3}, s{sT2}, 32768
s_sub_u32 s{sT2}, 32768, s{sT2}
v_add_u32 v{vWA0}, s{sT3}, v2
v_add_u32 v{vWA0+1}, s{sT2}, v2
v_add_u32 v{vWA2}, {2*SLOT}, v{vWA0}
v_add_u32 v{vWA2+1}, {2*SLOT}, v{vWA0+1}""")
def glu_stats_load():
    stat_soff()
    e(f"v_bfe_u32 v4, v{vLANE}, 4, 1\nv_and_b32 v5, 15, v{vLANE}\nv_lshl_add_u32 v4, v4, 6, v5\nv_lshlrev_b32 v4, 4, v4")
    for b in range(4):
        e.vm(f"buffer_load_dwordx4 {vr(vREC+4*b,4)}, v4, s[{S_WS}:{S_WS+3}], s{sT2} offen offset:{256*b} sc1", "stats")
C1 = -2.0 * math.sqrt(2.0 / math.pi) * LOG2E
vKK = [32, 34, 40, 42]; vV = 48
def glu_stats_fix():
    L = []
    for b in range(4):
        T = vREC + 4 * b; K = vKK[b]
        L += I(f"""v_mul_f32 v{K}, {fbits(C1)}, v{T+1}
v_mul_f32 v{K+1}, v{T+1}, v{T+1}
v_mov_b32 v{vV+b}, v{T+2}
v_mul_f32 v{K+1}, {fbits(0.044715)}, v{K+1}
v_mul_f32 v{K+1}, v{K+1}, v{K}""")
    return L + mfrag_fix()
left, r1 = main_loop("glu", glu_pre, glu_stats_load, glu_stats_fix)
interleave(r1, I(f"""s_lshl_b32 s{sT0}, s{sCT}, 1
s_add_u32 s{sT0}, s{sT0}, s{sNG}
s_lshl_b32 s{sT1}, s{sRB}, 1
s_add_u32 s{sT1}, s{sT1}, s{sTG}
s_mul_i32 s{sT1}, s{sT1}, {2*86*2048}
s_lshl_b32 s{sT2}, s{sT0}, 12
s_add_u32 s{sAOFF}, s{sT1}, s{sT2}
s_add_u32 s{sT4}, s{sAOFF}, {86*2048}
s_cmp_eq_u32 s{sT0}, 43
s_cselect_b32 s{sT2}, {OOB}, 0
v_lshl_add_u32 v2, v{vLANE}, 4, s{sT2}""") + b_read_addrs(36))
stamp(3)
TA, TB, WA, WB = 96, 98, 100, 102
vO = [104, 112]
st_ = []
for b in range(4):
    K = vKK[b]; O = vO[b & 1]; V = vV + (b & ~1); o = b & 1
    for i in range(0, 8, 2):
        zA, zB = acc(b, 0) + 2 * i, acc(b, 0) + 2 * i + 2
        uA, uB = acc(b, 1) + 2 * i, acc(b, 1) + 2 * i + 2
        L = [f"v_pk_mul_f32 {vr(T,2)}, {vr(z,2)}, {vr(z,2)}" for T, z in ((TA, zA), (TB, zB))]
        L += [f"v_pk_fma_f32 {vr(T,2)}, {vr(T,2)}, {vr(K,2)}, {vr(K,2)} op_sel:[0,1,0] op_sel_hi:[1,1,0]" for T in (TA, TB)]
        L += [f"v_pk_mul_f32 {vr(T,2)}, {vr(T,2)}, {vr(z,2)}" for T, z in ((TA, zA), (TB, zB))]
        L += [f"v_exp_f32 v{r}, v{r}" for r in (TA, TA + 1, TB, TB + 1)]
        L += [f"v_pk_mul_f32 {vr(W,2)}, {vr(z,2)}, {vr(u,2)}" for W, z, u in ((WA, zA, uA), (WB, zB, uB))]
        L += [f"v_pk_fma_f32 {vr(T,2)}, {vr(T,2)}, {vr(V,2)}, {vr(V,2)} op_sel:[0,{o},{o}] op_sel_hi:[1,{o},{o}]" for T in (TA, TB)]
        L += [f"v_rcp_f32 v{r}, v{r}" for r in (TA, TA + 1, TB, TB + 1)]
        L += [f"v_pk_mul_f32 {vr(W,2)}, {vr(W,2)}, {vr(T,2)}" for W, T in ((WA, TA), (WB, TB))]
        L += [f"v_cvt_pk_bf16_f32 v{O+i}, v{WA}, v{WA+1}", f"v_cvt_pk_bf16_f32 v{O+i+1}, v{WB}, v{WB+1}"]
        st_ += [(x, None) for x in L]
        if i in (2, 6):
            fr = i >> 2
            st_.append((f"buffer_store_dwordx4 {vr(O+4*fr,4)}, v2, s[{S_WS}:{S_WS+3}], s{sAOFF if b < 2 else sT4} offen offset:{1024*(b&1) + 2048*fr} sc1", "hh"))
seq = bseq(left)
p1, seq = take(seq, OPT["nepi"])
st_ = sprinkle(st_, R0(), 0, 30)
puts(sprinkle(st_, p1, len(st_) * OPT["f0"] // 100, len(st_) * OPT["f1"] // 100))
stamp(4)
p1, seq = take(seq, OPT["npre"])
puts(sprinkle(flag_off(0) + p2_addrs(2), p1))
e.vm_wait("hh")
flag_put(2)
if OPT["defer"]: e(f"v_mov_b32 v{vFA}, {OOB}")
stamp(5)
puts(fin_loads() + flat(seq) + [DFLAG])
stamp(7)
e.vm_wait("dflag")
spin_poll(vPL, vDF, S_WS, f"s{sFG}", first_loaded=True)
e("s_branch L_phase2")

e.vmq = []
e("L_ssm:")
vA, vCF, vq, vQ = 8, 10, 12, 6
e(f"""s_lshl_b32 s{sT1}, s{sT1}, 1
s_add_u32 s{sCT}, s{sT1}, s{sT0}
s_mov_b32 s{S_W+2}, 524288
s_mov_b32 s{sWSTEP}, 1
s_lshl_b32 s{sT2}, s{sTG}, 5
s_lshl_b32 s{sT3}, s{sCT}, 6
s_add_u32 s{sT2}, s{sT2}, s{sT3}
v_add_u32 v11, s{sT2}, v6
v_lshlrev_b32 v11, 10, v11
v_add_u32 v12, v11, v9
v_add_u32 v13, v11, v10""")
for i in range(4):
    e(f"v_add_u32 v{vWV+i}, {7168*i}, v{12 + (i&1)}")
vRHO = vREC + 6
e(f"""v_and_b32 v{vRHO}, 19, v{vLANE}
v_bfe_u32 v2, v{vLANE}, 2, 1
v_lshl_or_b32 v{vRHO}, v2, 3, v{vRHO}
v_bfe_u32 v2, v{vLANE}, 3, 1
v_lshl_or_b32 v{vRHO}, v2, 2, v{vRHO}
s_lshl_b32 s{sT2}, s{sNG}, 5
v_add_u32 v{vRHO}, s{sT2}, v{vRHO}
v_add_u32 v2, s{sT3}, v{vRHO}
v_lshlrev_b32 v2, 1, v2
s_mov_b32 s{S_M+2}, 1024
s_mov_b32 s{S_M+3}, 0x00020000
s_cmp_lt_u32 s{sWAVE}, 2
s_waitcnt lgkmcnt(0)
s_cselect_b32 s{S_W}, s{P_BRE}, s{P_BIM}
s_cselect_b32 s{S_W+1}, s{P_BRE+1}, s{P_BIM+1}
s_mov_b32 s{S_X}, s{P_X}
s_mov_b32 s{S_X+1}, s{P_X+1}""")
for p, r in ((P_LRE, vREC), (P_LIM, vREC + 1), (P_LDT, vREC + 2)):
    e(f"s_mov_b32 s{S_M}, s{p}\ns_mov_b32 s{S_M+1}, s{p+1}")
    e.vm(f"buffer_load_ushort v{r}, v2, s[{S_M}:{S_M+3}], 0 offen", "cst")
TAU_SSM = f"""v_bfe_u32 v{{0}}, v{vLANE}, 2, 1
v_and_b32 v{{1}}, 3, v{vLANE}
v_lshl_add_u32 v{{0}}, v{{0}}, 6, v{{1}}
v_bfe_u32 v{{1}}, v{vLANE}, 3, 2
v_lshl_add_u32 v{{0}}, v{{1}}, 2, v{{0}}"""
def ssm_pre():
    x_lds_addrs(TAU_SSM.format(2, 3))
    e(f"""v_lshrrev_b32 v3, 5, v{vLANE}
v_bfe_u32 v4, v{vRHO}, 1, 3
v_xor_b32 v4, v4, v3
s_lshl_b32 s{sT2}, s{sTG}, 1
v_xor_b32 v4, s{sT2}, v4
v_lshlrev_b32 v2, 7, v{vRHO}
v_add_u32 v2, 32768, v2""")
    for j in range(4):
        e(f"v_xor_b32 v5, {2*j}, v4\nv_lshl_add_u32 v{vWA0+j}, v5, 4, v2\nv_add_u32 v{vWA2+j}, {2*SLOT}, v{vWA0+j}")
    e.vm_wait("cst")
    lre, lim, t0, t1, t2, t3 = vREC, vREC + 1, vREC + 2, vREC + 3, vREC + 4, vREC + 5
    e(f"""v_lshlrev_b32 v{lre}, 16, v{lre}
v_lshlrev_b32 v{lim}, 16, v{lim}
v_lshlrev_b32 v{t0}, 16, v{t0}
v_mul_f32 v{t0}, {fbits(LOG2E)}, v{t0}
v_exp_f32 v{t0}, v{t0}
s_nop 0
v_cvt_pk_bf16_f32 v{t0}, v{t0}, v{t0}
v_and_b32 v{t0}, s{sMASK}, v{t0}
v_mul_f32 v{t1}, v{t0}, v{lre}
v_mul_f32 v{t2}, v{t0}, v{lim}
v_mul_f32 v{t1}, {fbits(LOG2E)}, v{t1}
v_mul_f32 v{t2}, {fbits(1/(2*math.pi))}, v{t2}
v_exp_f32 v{t1}, v{t1}
v_rndne_f32 v{t3}, v{t2}
v_sub_f32 v{t2}, v{t2}, v{t3}
v_cos_f32 v{t3}, v{t2}
v_sin_f32 v{t2}, v{t2}
v_mul_f32 v{vA}, v{t1}, v{t3}
v_mul_f32 v{t0}, v{lre}, v{lre}
v_mul_f32 v{vA+1}, v{t1}, v{t2}
v_fmac_f32 v{t0}, v{lim}, v{lim}
v_add_f32 v{t1}, -1.0, v{vA}
v_rcp_f32 v{t0}, v{t0}
v_mul_f32 v{t2}, v{t1}, v{lre}
v_mul_f32 v{t3}, v{vA+1}, v{lre}
v_fmac_f32 v{t2}, v{vA+1}, v{lim}
v_fma_f32 v{t3}, -v{t1}, v{lim}, v{t3}
v_add_f32 v{t0}, v{t0}, v{t0}
v_mul_f32 v{vCF}, v{t2}, v{t0}
v_mul_f32 v{vCF+1}, v{t3}, v{t0}""")
    cmul(4, vA, vA, 2)
    for k in range(5):
        cmul(vq if k % 2 == 0 else 4, 4 if k % 2 == 0 else vq, 4 if k % 2 == 0 else vq, 2)
    cmul(4, vq, vq, 2)
    cmul(vQ, 4, 4, 2)
def ssm_stats_load():
    stat_soff()
    e(TAU_SSM.format(4, 5) + "\nv_lshlrev_b32 v4, 4, v4")
    for b in range(4):
        e.vm(f"buffer_load_dword v{vREC+4*b}, v4, s[{S_WS}:{S_WS+3}], s{sT2} offen offset:{256*b} sc1", "stats")
    e(f"v_lshlrev_b32 v4, 3, v{vLANE}")
    e.vm(f"buffer_load_dwordx2 v[2:3], v4, s[{S_WS}:{S_WS+3}], s{sT3} offen sc1", "stats")
def ssm_stats_fix():
    return I(f"""s_lshl_b32 s{sT0}, s{sWAVE}, 9
s_add_u32 s{sT0}, s{sT0}, {L_XR}
v_lshl_add_u32 v4, v{vLANE}, 3, s{sT0}
v_lshrrev_b32 v5, 5, v{vLANE}
ds_write_b64 v4, v[2:3]
v_lshl_add_u32 v4, v5, 8, s{sT0}""") + mfrag_fix()
left, r1 = main_loop("ssm", ssm_pre, ssm_stats_load, ssm_stats_fix)
vR = 32
rr = [(f"ds_read_b128 {vr(vR+4*g,4)}, v4 offset:{16*g}", None) for g in range(16)]
interleave(r1, b_read_addrs(2 + 96) + rr[:6])
puts(rr[6:])
stamp(3)
def Ub(b): return 96 if b == 0 else acc(b - 1, 0)
st_ = []
for b in range(4):
    for r in range(16):
        o = r & 1
        st_.append((f"v_pk_mul_f32 {vr(Ub(b)+2*r,2)}, {vr(acc(b,0)+(r&~1),2)}, {vr(vCF,2)} op_sel:[{o},0] op_sel_hi:[{o},1]", None))
    for r in range(16):
        o = r & 1
        st_.append((f"v_pk_fma_f32 {vr(Ub(b)+2*r,2)}, {vr(acc(b,1)+(r&~1),2)}, {vr(vCF,2)}, {vr(Ub(b)+2*r,2)} op_sel:[{o},1,0] op_sel_hi:[{o},0,1] neg_lo:[0,1,0]", None))
st_.append(LGKM0)
for t in range(64):
    U = Ub(t >> 4) + 2 * (t & 15); o = t & 1
    st_.append((f"v_pk_mul_f32 {vr(U,2)}, {vr(U,2)}, {vr(vR+(t&~1),2)} op_sel:[0,{o}] op_sel_hi:[1,{o}]", None))
    if t: st_ += cfma_l(4, Ub(0) if t == 1 else 4, vA, U, 2)
seq = bseq(left)
p1, seq = take(seq, OPT["ns1"])
st_ = sprinkle(st_, R0(), 0, 30)
vLo, vHi, vPub, vGA, vQ1, vM, vPd, vAA = 32, 34, 36, 40, 48, 50, 52, 226
pubaddr = I(f"""s_lshl_b32 s{sT4}, s{sRB}, 1
s_add_u32 s{sT4}, s{sT4}, s{sTG}
s_lshl_b32 s{sT0}, s{sCT}, 1
s_add_u32 s{sT0}, s{sT0}, s{sNG}
s_lshl_b32 s{sT0}, s{sT0}, 9
s_lshl_b32 s{sT1}, s{sT4}, 13
s_add_u32 s{sT0}, s{sT0}, s{sT1}
s_add_u32 s{sT0}, s{sT0}, {WS_AGG}
v_and_b32 v{vAA}, 31, v{vLANE}
v_lshl_add_u32 v{vAA}, v{vAA}, 4, s{sT0}""")
k_ = len(st_) - 100
st_ = st_[:k_] + pubaddr + st_[k_:]
puts(sprinkle(st_, p1, 30, len(st_) - 10))
e(f"""v_mov_b32 v{vLo}, v4
v_mov_b32 v{vLo+1}, v5
v_mov_b32 v{vPub+1}, 1
v_mov_b32 v{vPub+3}, 1
v_permlane32_swap_b32 v{vLo}, v4
v_permlane32_swap_b32 v{vLo+1}, v5""")
cfma(vHi, vLo, vq, 4, 2)
e(f"v_mov_b32 v{vPub}, v{vHi}\nv_mov_b32 v{vPub+2}, v{vHi+1}\ns_mov_b32 exec_hi, 0")
e.vm(f"buffer_store_dwordx4 {vr(vPub,4)}, v{vAA}, s[{S_WS}:{S_WS+3}], 0 offen sc1", "pub")
e("s_mov_b64 exec, -1")
stamp(4)
vI, vG = 60, 224
def wait_work():
    cmul(vQ1, vq, vq, 2)
    e(f"""v_lshrrev_b32 v54, 5, v{vLANE}
v_sub_u32 v55, s{sT4}, v54
v_lshlrev_b32 v54, 13, v54
v_sub_u32 v54, v{vAA}, v54
v_mov_b32 v56, {WS_NUL}""")
    for k in range(8):
        e(f"v_cmp_lt_i32 vcc, {2*k}, v55\nv_subrev_u32 v{vGA+k}, {8192 + 16384*k}, v54\ns_nop 0\nv_cndmask_b32 v{vGA+k}, v56, v{vGA+k}, vcc")
    e(f"""v_cmp_lt_u32 vcc, 31, v{vLANE}
v_bfe_u32 v54, v{vLANE}, 4, 1
v_lshrrev_b32 v55, 5, v{vLANE}
v_cndmask_b32 v{vM}, 1.0, v{vq}, vcc
v_cndmask_b32 v{vM+1}, 0, v{vq+1}, vcc
v_cndmask_b32 v{vPd}, 0, v{vLo}, vcc
v_cndmask_b32 v{vPd+1}, 0, v{vLo+1}, vcc
v_cmp_eq_u32 vcc, v54, v55
v_and_b32 v54, 1, v{vLANE}
v_lshlrev_b32 v54, 4, v54
v_mov_b32 v55, 0x3f80
v_lshlrev_b32 v54, v54, v55
v_bfe_u32 v55, v{vLANE}, 1, 3
v_cndmask_b32 v54, 0, v54, vcc""")
    for k in range(8):
        e(f"v_cmp_eq_u32 vcc, {k}, v55\ns_nop 1\nv_cndmask_b32 v{vI+k}, 0, v54, vcc")
    e(f"""s_lshl_b32 s{sT0}, s{sCT}, 1
s_add_u32 s{sT0}, s{sT0}, s{sNG}
s_lshl_b32 s{sT0}, s{sT0}, 13
s_lshl_b32 s{sT1}, s{sT4}, 18
s_add_u32 s{sT0}, s{sT0}, s{sT1}
s_add_u32 s{sAOFF}, s{sT0}, {WS_H}
v_lshlrev_b32 v54, 4, v{vLANE}""")
p1, seq = take(seq, OPT["ns2"])
puts(sprinkle(capture(wait_work) + flag_off(48) + p2_addrs(56), p1))
Lp, Ld = e.label("agg"), e.label("aggd")
e(f"s_mov_b32 s{sCNT}, {SPIN}\n{Lp}:")
for k in range(8):
    e(f"buffer_load_dwordx4 {vr(vG+4*k,4)}, v{vGA+k}, s[{S_WS}:{S_WS+3}], 0 offen sc1")
e("s_waitcnt vmcnt(0)")
e.vmq = []
e(f"v_and_b32 v56, v{vG+1}, v{vG+3}")
for k in range(1, 8):
    e(f"v_and_b32 v57, v{vG+4*k+1}, v{vG+4*k+3}\nv_and_b32 v56, v56, v57")
e(f"""v_cmp_ne_u32 vcc, 0, v56
s_nop 1
s_cmp_eq_u64 vcc, -1
s_cbranch_scc1 {Ld}
s_sub_u32 s{sCNT}, s{sCNT}, 1
s_cbranch_scc0 {Lp}
{Ld}:""")
puts([DFLAG] + fin_loads())
for k in range(8):
    e(f"v_mov_b32 v{vG+4*k+1}, v{vG+4*k+2}")
cfma(4, vG + 28, vQ, vG + 24, 2)
for k in range(5, -1, -1):
    cfma(4, 4, vQ, vG + 4 * k, 2)
e(f"v_mov_b32 v{vLo}, v4\nv_mov_b32 v{vLo+1}, v5\ns_nop 1\nv_permlane32_swap_b32 v{vLo}, v4\nv_permlane32_swap_b32 v{vLo+1}, v5")
cfma(4, 4, vQ1, vLo, 2)
cfma(4, 4, vM, vPd, 2)
stamp(5)
vP, vO2 = 68, 36
def d2_out(b):
    out = []
    for ci in range(2):
        out.append((f"s_add_u32 s{sT0}, s{sAOFF}, {(b>>1)*64*2048 + ci*4096}", None))
        for fr in range(2):
            for i in range(4):
                r = Ub(b) + 16 * ci + 8 * fr + 2 * i
                out.append((f"v_cvt_pk_bf16_f32 v{vO2+8*ci+4*fr+i}, v{r}, v{r+1}", None))
            out.append((f"buffer_store_dwordx4 {vr(vO2+8*ci+4*fr,4)}, v54, s[{S_WS}:{S_WS+3}], s{sT0} offen offset:{1024*(b&1)+2048*fr} sc1", "h"))
    return out
for b in range(4):
    st_ = flat([cfma_l(Ub(b) + 2 * r, 4 if r == 0 else Ub(b) + 2 * r - 2, vA, Ub(b) + 2 * r, 2) for r in range(16)])
    p1, seq = take(seq, OPT["ns5"])
    puts(sprinkle(st_, p1))
    for i in range(8): e(f"v_cvt_pk_bf16_f32 v{vP+i}, v{Ub(b)+4*i}, v{Ub(b)+4*i+2}")
    for i in range(8): e(f"v_cvt_pk_bf16_f32 v{vP+8+i}, -v{Ub(b)+4*i+1}, -v{Ub(b)+4*i+3}")
    e(f"v_mov_b32 v4, v{Ub(b)+30}\nv_mov_b32 v5, v{Ub(b)+31}")
    ms = []
    for h_ in range(2):
        for ci in range(2):
            D = vr(Ub(b) + 16 * ci, 16)
            ms.append(f"v_mfma_f32_32x32x16_bf16 {D}, {vr(vP+8*ci+4*h_,4)}, {vr(vI+4*h_,4)}, {D if h_ else '0'}")
    interleave(ms, d2_out(b - 1) if b else [])
e("s_nop 11")
puts(d2_out(3))
stamp(14)
if not OPT["defer"]:
    p1, seq = take(seq, OPT["ns3"])
    puts(flat(p1))
    e.vm_wait("h")
    flag_put(2)
puts(flat(seq))
stamp(6)
e.vm_wait(["dflag", "fin"])
spin_poll(vPL, vDF, S_WS, f"s{sFG}", first_loaded=True)
e("s_branch L_phase2")

e.vmq = []
e("; ---------------- stats role")
e("L_stats:")
e(f"""s_sub_u32 s{sCT}, s{sCT}, 22
s_lshl_b32 s{sT0}, s{sRB}, 1
s_add_u32 s{sT4}, s{sT0}, s{sCT}
s_lshl_b32 s{sT0}, s{sT4}, 7
s_lshl_b32 s{sT1}, s{sWAVE}, 5
s_add_u32 s{sT5}, s{sT0}, s{sT1}
v_add_u32 v2, s{sT5}, v8
v_lshlrev_b32 v2, 10, v2
v_and_b32 v3, 15, v{vLANE}
v_lshl_add_u32 v2, v3, 4, v2
s_waitcnt lgkmcnt(0)
s_mov_b32 s{S_X}, s{P_X}
s_mov_b32 s{S_X+1}, s{P_X+1}""")
for u in range(8):
    e(f"s_mov_b32 s{sT0}, {4096*u}")
    for i in range(4):
        e.vm(f"buffer_load_dwordx4 {vr(128+16*u+4*i,4)}, v2, s[{S_X}:{S_X+3}], s{sT0} offen offset:{256*i}", f"x{u}")
late_setup()
e(f"""v_mov_b32 v4, 0
v_mov_b32 v5, 0
v_mov_b32 v6, 0
v_mov_b32 v7, 0
s_lshl_b32 s{sT0}, s{sT4}, 13
s_add_u32 s{sT0}, s{sT0}, {WS_AGG}
s_add_u32 s{sT1}, s{sT0}, 4096
v_lshlrev_b32 v9, 4, v0""")
e.vm(f"buffer_store_dwordx4 v[4:7], v9, s[{S_WS}:{S_WS+3}], s{sT0} offen sc1", "z")
e.vm(f"buffer_store_dwordx4 v[4:7], v9, s[{S_WS}:{S_WS+3}], s{sT1} offen sc1", "z")
e(f"""s_lshl_b32 s{sT0}, s{sT4}, 13
s_lshl_b32 s{sT1}, s{sWAVE}, 11
s_add_u32 s{sT0}, s{sT0}, s{sT1}
s_add_u32 s{sT0}, s{sT0}, {WS_FLAG}
v_lshlrev_b32 v9, 7, v3""")
e.vm(f"buffer_store_dword v4, v9, s[{S_WS}:{S_WS+3}], s{sT0} offen sc1", "z")
e(f"""s_or_b32 s{sT0}, s{sT4}, s{sWAVE}
s_mov_b32 s{sT1}, {WS_NUL}
s_cmp_eq_u32 s{sT0}, 0
s_cselect_b32 s{sT0}, s{sT1}, {OOB}
v_mov_b32 v9, s{sT0}
v_mov_b32 v80, 0
v_mov_b32 v81, 1
v_mov_b32 v82, 0
v_mov_b32 v83, 1
s_mov_b64 exec, 1""")
e.vm(f"buffer_store_dwordx4 v[80:83], v9, s[{S_WS}:{S_WS+3}], 0 offen sc1", "z")
e("s_mov_b64 exec, -1")
for f in b_touch(): f()
e("v_mov_b32 v10, 0x3f803f80")
vSU, vSQ = 64, 72
for u in range(8):
    e.vm_wait(f"x{u}")
    d = 128 + 16 * u
    e(f"v_dot2_f32_bf16 v{vSU+u}, v{d}, v10, 0\nv_dot2_f32_bf16 v{vSQ+u}, v{d}, v{d}, 0\ns_nop 1")
    for i in range(1, 16):
        e(f"v_dot2_f32_bf16 v{vSU+u}, v{d+i}, v10, v{vSU+u}\nv_dot2_f32_bf16 v{vSQ+u}, v{d+i}, v{d+i}, v{vSQ+u}")
e("s_nop 2")
for sh in (8, 4, 2, 1):
    for r in range(vSU, vSU + 16):
        e(f"v_add_f32_dpp v{r}, v{r}, v{r} row_ror:{sh} row_mask:0xf bank_mask:0xf")
for u in range(1, 8):
    e(f"v_cmp_eq_u32 vcc, {u}, v3\ns_nop 1\nv_cndmask_b32 v{vSU}, v{vSU}, v{vSU+u}, vcc\nv_cndmask_b32 v{vSQ}, v{vSQ}, v{vSQ+u}, vcc")
e(f"""v_mul_f32 v7, {fbits(1/512)}, v{vSU}
v_mul_f32 v6, {fbits(1/512)}, v{vSQ}
v_fma_f32 v6, -v7, v7, v6
v_max_f32 v6, 0, v6
v_add_f32 v6, {fbits(1e-5)}, v6
v_rsq_f32 v5, v6
v_cvt_pk_bf16_f32 v4, -v7, -v7
v_and_b32 v9, s{sMASK}, v4
v_sub_f32 v9, -v7, v9
v_cvt_pk_bf16_f32 v9, v9, v9
v_lshrrev_b32 v4, 16, v4
v_and_or_b32 v4, v9, s{sMASK}, v4
v_lshl_add_u32 v9, v3, 2, v8
v_add_u32 v9, s{sT5}, v9
v_lshlrev_b32 v11, 4, v9
v_lshlrev_b32 v12, 2, v9
v_cmp_gt_u32 vcc, 8, v3
s_mov_b32 s{sT0}, {WS_STAT}
s_mov_b32 s{sT1}, {WS_R}
s_mov_b64 exec, vcc""")
e.vm(f"buffer_store_dwordx4 v[4:7], v11, s[{S_WS}:{S_WS+3}], s{sT0} offen sc1", "z")
e.vm(f"buffer_store_dword v5, v12, s[{S_WS}:{S_WS+3}], s{sT1} offen sc1", "z")
e("s_mov_b64 exec, -1")
e.vm_wait_all()
e("s_barrier")
srd(S_M, P_DBG, 256)
e(f"""s_lshl_b32 s{sT0}, s{sT4}, 2
s_cmp_eq_u32 s{sWAVE}, 0
s_cselect_b32 s{sT0}, s{sT0}, {OOB}
v_mov_b32 v2, s{sT0}
v_mov_b32 v3, 1
s_mov_b64 exec, 1""")
e.vm(f"buffer_store_dword v3, v2, s[{S_M}:{S_M+3}], 0 offen sc1", "sig")
e("s_mov_b64 exec, -1")
stamp(20 if 'leak' in OPT else 1)
puts(b_read_addrs(4) + flat(cgroups(range(8)) + dgroups([0])) + flat(R0() + bseq([])))
e(f"v_min_u32 v2, 15, v{vLANE}\nv_lshlrev_b32 v2, 2, v2")
spin_poll(3, 2, S_M, "0")
stamp(21 if 'leak' in OPT else 2)
e(f"v_mov_b32 v{vFA}, {OOB}\ns_mov_b32 s{sFL}, 0")
puts(p2_addrs(2) + fin_loads())
spin_poll(vPL, vDF, S_WS, f"s{sFG}")

e("; ---------------- phase 2")
e("L_phase2:")
e.vmq = ["?"]
stamp(8)
vRW, vRR, vYR, vTR, vRW2, vTW, vL16 = 32, 35, 37, 38, 12, 8, 7
def a_loads(ks, tag, y=False):
    B = vAB + 8 * ((ks + (22 if y else 0)) % NB)
    a0, a1 = (vA0x, vA1x) if ks >= 20 else (vA0, vA1)
    so = sYA if y else sDA
    L = [[(f"buffer_load_dwordx4 {vr(B,4)}, v{a0}, s[{S_WS}:{S_WS+3}], s{so} offen offset:{2048*(ks&1)} sc1", tag)],
         [(f"buffer_load_dwordx4 {vr(B+4,4)}, v{a1}, s[{S_WS}:{S_WS+3}], s{so} offen offset:{2048*(ks&1)} sc1", tag)]]
    if ks & 1: L[1].append((f"s_add_u32 s{so}, s{so}, 4096", None))
    return L
def p2_mfmas(D0, wreg, ks):
    return [f"v_mfma_f32_32x32x16_bf16 {ar(D0+16*i,16)}, {wreg(i&1)}, {vr(vAB + 8*((ks + (22 if D0 == A_Y else 0)) % NB) + 4*(i>>1), 4)}, {'0' if ks == 0 else ar(D0+16*i,16)}" for i in range(4)]
LEAD = OPT["lead"]
q = [g for ks in range(22) for g in a_loads(ks, f"a{ks}")] + [g for ks in range(16) for g in a_loads(ks, f"y{ks}", True)]
puts(flat(q[:2 * LEAD])); q = q[2 * LEAD:]
for r in range(20):
    e(f"v_accvgpr_read_b32 v{vXQ+r}, a{A_DN+r}")
srd(S_M, P_OUT, 4194304)
for base in (vXQ, vDQ):
    for k in (0, 1, 4, 5):
        e(f"v_permlane32_swap_b32 v{base+k}, v{base+k+2}")
def early_work():
    e(f"v_lshlrev_b32 v{vL16}, 4, v{vLANE}")
    for i in range(1, 4):
        e(f"s_xor_b32 s{sT0}, s{sWAVE}, {i}")
        if i < 3:
            e(f"s_mul_i32 s{sT0}, s{sT0}, 12288\ns_add_u32 s{sT1}, s{sT0}, {2*SLOT + 4096*i}")
        else:
            e(f"s_lshl_b32 s{sT1}, s{sT0}, 12\ns_add_u32 s{sT1}, s{sT1}, {L_MISC}\ns_mul_i32 s{sT0}, s{sT0}, 12288")
        e(f"v_add_u32 v{vRW+i-1}, s{sT1}, v{vL16}\ns_add_u32 s{sT0}, s{sT0}, {4096*(i-1)}\nv_add_u32 v{vRW2+i-1}, s{sT0}, v{vL16}")
    e(f"""s_lshl_b32 s{sT0}, s{sWAVE}, 12
s_add_u32 s{sT0}, s{sT0}, {L_MISC}
v_add_u32 v{vRR}, s{sPB0}, v{vL16}
v_add_u32 v{vRR+1}, s{sT0}, v{vL16}
v_add_u32 v{vYR}, s{sPB1}, v{vL16}
s_add_u32 s{sT0}, s{sPB1}, {SLOT}
v_and_b32 v2, 31, v{vLANE}
v_lshl_add_u32 v2, v2, 7, s{sT0}
v_lshrrev_b32 v3, 5, v{vLANE}
v_and_b32 v4, 7, v{vLANE}
v_xor_b32 v3, v3, v4
v_lshl_add_u32 v{vTW}, v3, 4, v2
v_xor_b32 v{vTW+1}, 32, v{vTW}
v_xor_b32 v{vTW+2}, 64, v{vTW}
v_xor_b32 v{vTW+3}, 96, v{vTW}
v_lshrrev_b32 v3, 3, v{vLANE}
v_xor_b32 v4, v4, v3
v_lshl_add_u32 v3, v3, 7, s{sT0}
v_lshl_add_u32 v{vTR}, v4, 4, v3
s_mov_b32 s{sO1}, {8*2048}
s_mov_b32 s{sO2}, {64*2048}
s_mov_b32 s{sO3}, {72*2048}""")
    for k in range(8):
        j = (k & 1) + 2 * [0, 2, 1, 3][k >> 1]
        e(f"""v_lshlrev_b32 v{vXFf+2*k}, 16, v{vXQ+j}
v_and_b32 v{vXFf+2*k+1}, s{sMASK}, v{vXQ+j}
v_lshlrev_b32 v{vGt+2*k}, 16, v{vDQ+j}
v_and_b32 v{vGt+2*k+1}, s{sMASK}, v{vDQ+j}""")
    for r in range(16):
        e(f"v_sub_f32 v{vZ+r}, v{vXFf+r}, v{vRC+3}\nv_mul_f32 v{vGt+r}, v{vGt+r}, v{vRC+1}\nv_mul_f32 v{vZ+r}, v{vZ+r}, v{vGt+r}")
pre_ = capture(early_work)
KY = 22 - LEAD
for ks in range(22):
    e.vm_wait(f"a{ks}")
    if ks >= 8: e("s_waitcnt lgkmcnt(0)")
    gaps = [[] for _ in range(4)]
    if ks == 0 and OPT["defer"]: gaps[0].append((lambda: flag_put(5), None))
    if ks == 7: gaps[3].append(("s_barrier", None))
    if 8 <= ks + 1 < 22:
        for ds in range(2):
            r0 = vWB[(ks + 1) & 1] + 4 * ds
            gaps[ds] += dfrag_reads((ks + 1) >> 1, (ks + 1) & 1, ds, lambda o, r0=r0: vr(r0 + o, 2))
    for gi in range(4):
        n_ = 5 - len(gaps[gi]) - (gi >= 2)
        gaps[gi] += pre_[:n_]; pre_ = pre_[n_:]
    if ks == KY - 3:
        gaps[0].append((f"buffer_load_dword v{vPL}, v{vYF}, s[{S_WS}:{S_WS+3}], s{sFG} offen sc1", "yflag"))
    if ks == KY:
        def chk():
            e.vm_wait("yflag"); stamp(9)
            spin_poll(vPL, vYF, S_WS, f"s{sFG}", first_loaded=True); stamp(10)
        gaps[1].append((chk, None))
    for gi in (2, 3): gaps[gi] += q.pop(0)
    wreg = (lambda d: ar(A_Y + 8 * ks + 4 * d, 4)) if ks < 8 else (lambda d: vr(vWB[ks & 1] + 4 * d, 4))
    for m, g in zip(p2_mfmas(A_DN, wreg, ks), gaps):
        e(m); puts(g)
assert not pre_
stamp(11)
tmp = [56, 224, 240]
def down_finish():
    e("s_nop 5")
    for i in range(1, 4):
        for qd in range(4):
            e(f"ds_write_b128 v{vRW+i-1}, {ar(A_DN+16*i+4*qd,4)} offset:{1024*qd}")
    for r in range(16): e(f"v_accvgpr_read_b32 v{vGt+r}, a{A_DN+r}")
    e("s_waitcnt lgkmcnt(0)\ns_barrier")
    for i in range(3):
        for qd in range(4):
            e(f"ds_read_b128 {vr(tmp[i]+4*qd,4)}, v{vRR + (i == 2)} offset:{(4096*(i+1) if i < 2 else 0) + 1024*qd}")
    for i in range(3):
        e(f"s_waitcnt lgkmcnt({8-4*i})")
        for r in range(16): e(f"v_add_f32 v{vGt+r}, v{vGt+r}, v{tmp[i]+r}")
    e(f"s_mov_b32 s{sT0}, {fbits(-LOG2E)}")
    for r in range(16): e(f"v_mul_f32 v{40+r}, s{sT0}, v{vGt+r}")
    for r in range(16): e(f"v_exp_f32 v{40+r}, v{40+r}")
    for r in range(16): e(f"v_add_f32 v{40+r}, 1.0, v{40+r}")
    for r in range(16): e(f"v_rcp_f32 v{40+r}, v{40+r}")
    for r in range(16): e(f"v_mul_f32 v{vGt+r}, v{vGt+r}, v{40+r}")
st_ = capture(down_finish)
NPG = math.ceil(len(st_) / 56)
for ks in range(14):
    e.vm_wait(f"y{ks}")
    gaps = [[] for _ in range(4)]
    for gi in (1, 3):
        if q: gaps[gi] += q.pop(0)
    for gi in range(4):
        gaps[gi] += st_[:NPG]; st_ = st_[NPG:]
    for m, g in zip(p2_mfmas(A_Y, lambda d: ar(A_C + 8 * ks + 4 * d, 4), ks), gaps):
        e(m); puts(g)
assert not st_ and not q
m14, m15 = (p2_mfmas(A_Y, lambda d: ar(A_C + 8 * ks + 4 * d, 4), ks) for ks in (14, 15))
e.vm_wait("y14")
for m in m14[1:]: e(m)
e.vm_wait("y15")
for m in m15[1:] + [m14[0], m15[0]]: e(m)
stamp(12)
e("s_nop 7")
for i in range(1, 4):
    for qd in range(4):
        e(f"ds_write_b128 v{vRW2+i-1}, {ar(A_Y+16*i+4*qd,4)} offset:{1024*qd}")
for r in range(16): e(f"v_accvgpr_read_b32 v{40+r}, a{A_Y+r}")
for r in range(0, 16, 2): e(f"v_pk_add_f32 {vr(vZ+r,2)}, {vr(vZ+r,2)}, {vr(40+r,2)}")
e("s_waitcnt lgkmcnt(0)\ns_barrier")
stamp(15)
for qd in range(4):
    for i in range(3):
        e(f"ds_read_b128 {vr(96+16*i+4*qd,4)}, v{vYR} offset:{4096*i + 1024*qd}")
for g in range(4):
    e(f"s_waitcnt lgkmcnt({9 - 2*g})")
    for i in range(3):
        for r in (4 * g, 4 * g + 2): e(f"v_pk_add_f32 {vr(vZ+r,2)}, {vr(vZ+r,2)}, {vr(96+16*i+r,2)}")
    for r in (4 * g, 4 * g + 2): e(f"v_pk_fma_f32 {vr(vZ+r,2)}, {vr(vZ+r,2)}, {vr(vGt+r,2)}, {vr(vXFf+r,2)}")
    e(f"ds_write_b128 v{vTW+g}, {vr(vZ+4*g,4)}")
for i in range(4): e(f"ds_read_b128 {vr(144+4*i,4)}, v{vTR} offset:{1024*i}")
for i in range(4):
    e(f"s_waitcnt lgkmcnt({3-i})")
    e.vm(f"buffer_store_dwordx4 {vr(144+4*i,4)}, v{vOA}, s[{S_M}:{S_M+3}], {['0', f's{sO1}', f's{sO2}', f's{sO3}'][i]} offen{OUTF}", "out")
if OPT["stamp"]:
    stamp(16); e.vm_wait_all(); stamp(13)
    e(f"""s_lshl_b32 s{sT0}, s2, 2
s_add_u32 s{sT0}, s{sT0}, s{sWAVE}
s_lshl_b32 s{sT0}, s{sT0}, 8
s_add_u32 s{sT0}, s{sT0}, {WS_STAMP}
v_lshlrev_b32 v14, 2, v{vLANE}
buffer_store_dword v15, v14, s[{S_WS}:{S_WS+3}], s{sT0} offen""")
if "leak" in OPT:
    e("s_waitcnt vmcnt(0)")
    stamp(13)
    e(f"""s_sub_u32 s3, s3, s100
s_lshl_b32 s3, s3, 1
s_memrealtime s[{sST}:{sST+1}]
s_waitcnt lgkmcnt(0)
s_add_u32 s3, s3, s{sST}
Lleak:
s_memrealtime s[{sST}:{sST+1}]
s_waitcnt lgkmcnt(0)
s_cmp_lt_u32 s{sST}, s3
s_cbranch_scc1 Lleak""")
e(f"""L_end:
s_endpgm
.section .rodata,"a"
.p2align 6
.amdhsa_kernel {KN}
.amdhsa_next_free_vgpr 512
.amdhsa_next_free_sgpr {102 if 'leak' in OPT else 100}
.amdhsa_accum_offset 256
.amdhsa_group_segment_fixed_size 0
.amdhsa_kernarg_size 128
.amdhsa_user_sgpr_count 2
.amdhsa_user_sgpr_kernarg_segment_ptr 1
.amdhsa_system_sgpr_workgroup_id_x 1
.amdhsa_float_denorm_mode_32 3
.end_amdhsa_kernel""")
txt = e.text()
probs = check_hazards(txt)
for p in probs: sys.stderr.write(p + "\n")
sys.stderr.write(f"{len(probs)} hazard findings, {len(txt)} bytes\n")
open(sys.argv[1], "w").write(txt)
```
